```python
import torch

def _softmax(x, axis=-1):
    return torch.softmax(x, dim=axis)
def _gelu(x):
    return torch.nn.functional.gelu(x, approximate="tanh")
def _silu(x):
    return torch.nn.functional.silu(x)
def _sigmoid(x):
    return torch.sigmoid(x)
def _layernorm(x, axis=-1, eps=1e-5):
    m = x.mean(dim=axis, keepdim=True)
    v = x.var(dim=axis, keepdim=True, unbiased=False)
    return (x - m) / torch.sqrt(v + eps)
def _scatter_add(tgt, idx, src, axis=0):
    return tgt.clone().index_add_(axis, idx, src)
def _segment_sum(src, seg, n):
    out = torch.zeros((n,) + src.shape[1:], dtype=src.dtype)
    return out.index_add_(0, seg, src)
def _pad(x, pw):
    flat = tuple(v for pair in reversed(pw) for v in pair)
    return torch.nn.functional.pad(x, flat)

kernel_name = 'interleave_layers__sliding_block_cached__glu_gated_glu__decode'

def setup_inputs():

    _w = (lambda a: (lambda t: t.to(torch.bfloat16) if t.is_floating_point() else t)(torch.as_tensor(a)))
    def _A_setup():
        B, Sq, D = 8, 1, 448
        Hq, Hkv, Sk, Dh = 16, 8, 4096, 256
        assert Hq % Hkv == 0, (Hq, Hkv)
        return {
            "x": _w((lambda *s: torch.randn(*s, dtype=torch.bfloat16) * 0.05)(B, Sq, D)),
            "k_cache": _w((lambda *s: torch.randn(*s, dtype=torch.bfloat16) * 1.6)(B, Hkv, Sk, Dh)),
            "v_cache": _w((lambda *s: torch.randn(*s, dtype=torch.bfloat16) * 1.6)(B, Hkv, Sk, Dh)),
            "wq": _w((lambda *s: torch.randn(*s, dtype=torch.bfloat16) * 1.6)(D, Hq * Dh) * (D ** -0.5)),
            "wo": _w((lambda *s: torch.randn(*s, dtype=torch.bfloat16) * 1.6)(Hq * Dh, D) * ((Hq * Dh) ** -0.5)),
        }
    _A_in = _A_setup()

    def _B_setup():
        B, S, D, F = 8, 1, 448, 1792
        return {
            "x": _w((lambda *s: torch.randn(*s, dtype=torch.bfloat16) * 0.05)(B, S, D)),
            "w_gate": _w((lambda *s: torch.randn(*s, dtype=torch.bfloat16) * 0.05)(D, F)),
            "w_up": _w((lambda *s: torch.randn(*s, dtype=torch.bfloat16) * 0.05)(D, F)),
            "w_down": _w((lambda *s: torch.randn(*s, dtype=torch.bfloat16) * 0.05)(F, D)),
        }
    _B_in = _B_setup()

    return {
        "A_x": _A_in["x"],
        "A_k_cache": _A_in["k_cache"],
        "A_v_cache": _A_in["v_cache"],
        "A_wq": _A_in["wq"],
        "A_wo": _A_in["wo"],
        "B_x": _B_in["x"],
        "B_w_gate": _B_in["w_gate"],
        "B_w_up": _B_in["w_up"],
        "B_w_down": _B_in["w_down"],
    }

def reference(A_x, A_k_cache, A_v_cache, A_wq, A_wo, B_x, B_w_gate, B_w_up, B_w_down):
    def _A_ref(x, k_cache, v_cache, wq, wo):
        B, Sq, D = x.shape
        Hq, Dh = 16, 256
        Hkv, Sk = k_cache.shape[1], k_cache.shape[2]
        W = min(4096, max(256, Sk // 4))
        rep = Hq // Hkv
        q = (lambda x, *d: x.permute(*d))((x @ wq).reshape(B, Sq, Hq, Dh), 0, 2, 1, 3)
        k = (lambda x, n, axis: torch.repeat_interleave(x, n, dim=axis))(k_cache[:, :, Sk - W:, :], rep, axis=1)
        v = (lambda x, n, axis: torch.repeat_interleave(x, n, dim=axis))(v_cache[:, :, Sk - W:, :], rep, axis=1)
        scores = torch.einsum("bhqd,bhkd->bhqk", q, k) * (Dh ** -0.5)
        p = _softmax(scores, axis=-1)
        o = torch.einsum("bhqk,bhkd->bhqd", p, v)
        return (lambda x, *d: x.permute(*d))(o, 0, 2, 1, 3).reshape(B, Sq, Hq * Dh) @ wo

    def _B_ref(x, w_gate, w_up, w_down):
        g = torch.einsum("bsd,df->bsf", x, w_gate)
        u = torch.einsum("bsd,df->bsf", x, w_up)
        h = _sigmoid(g) * u
        return torch.einsum("bsf,fd->bsd", h, w_down)

    x = A_x
    x = x + _A_ref(_layernorm(x, axis=-1), A_k_cache, A_v_cache, A_wq, A_wo)
    x = x + _B_ref(_layernorm(x, axis=-1), B_w_gate, B_w_up, B_w_down)
    x = x + _A_ref(_layernorm(x, axis=-1), A_k_cache, A_v_cache, A_wq, A_wo)
    x = x + _B_ref(_layernorm(x, axis=-1), B_w_gate, B_w_up, B_w_down)
    return x
```

```python
import re

REG = re.compile(r"\b([vas])\[(\d+):(\d+)\]|\b([vas])(\d+)\b|\b(vcc|exec|m0|scc)\b")
TRANS = ("v_exp_f32", "v_log_f32", "v_rcp_f32", "v_rsq_f32", "v_sqrt_f32", "v_sin_f32", "v_cos_f32", "v_rcp_iflag_f32")


def regs_of(op):
    out = []
    for m in REG.finditer(op):
        if m.group(1):
            out += [(m.group(1), i) for i in range(int(m.group(2)), int(m.group(3)) + 1)]
        elif m.group(4):
            out.append((m.group(4), int(m.group(5))))
        else:
            out.append((m.group(6), 0))
    return out


def split_ops(s):
    ops, depth, cur = [], 0, ""
    for ch in s:
        if ch in "[(":
            depth += 1
        if ch in "])":
            depth -= 1
        if ch == "," and depth == 0:
            ops.append(cur.strip()); cur = ""
        else:
            cur += ch
    if cur.strip():
        ops.append(cur.strip())
    return ops


class Ins:
    def __init__(self, line):
        self.line = line
        t = line.split(";")[0].strip()
        sp = t.split(None, 1)
        self.op = sp[0]
        rest = sp[1] if len(sp) > 1 else ""
        self.ops = split_ops(rest)
        op = self.op
        self.kind = "other"
        self.w, self.r = [], []
        self.dpp = False
        self.mA = self.mB = self.mC = []
        o = self.ops
        R = regs_of
        if op.startswith("v_mfma"):
            self.kind = "mfma"
            self.w = R(o[0]); self.mA = R(o[1]); self.mB = R(o[2]); self.mC = R(o[3].split()[0]) if len(o) > 3 else []
            self.r = self.mA + self.mB + self.mC
            self.passes = 8 if "32x32" in op else 4
        elif op.startswith("v_"):
            self.kind = "valu"
            oo = [x.split()[0] if i == len(o) - 1 else x for i, x in enumerate(o)]
            self.dpp = "_dpp" in op or "quad_perm" in rest or "row_" in rest
            if op.startswith("v_permlane"):
                self.w = R(oo[0]) + R(oo[1]); self.r = list(self.w); self.kind = "permlane"
            elif op.startswith("v_cmp"):
                self.w = R(oo[0]); self.r = sum((R(x) for x in oo[1:]), [])
            elif op.startswith(("v_add_co", "v_sub_co", "v_addc_co", "v_subb_co")):
                self.w = R(oo[0]) + R(oo[1]); self.r = sum((R(x) for x in oo[2:]), [])
            else:
                self.w = R(oo[0]); self.r = sum((R(x) for x in oo[1:]), [])
                if op.startswith(("v_fmac", "v_dot2c", "v_writelane")) or self.dpp:
                    self.r += R(oo[0])
                if op.startswith("v_cndmask") and len(oo) == 3:
                    self.r.append(("vcc", 0))
            self.dppsrc = R(oo[1]) if self.dpp else []
            self.trans = op.replace("_e32", "").replace("_e64", "") in TRANS
            self.rdlane = op.startswith(("v_readlane", "v_readfirstlane"))
            self.lanesel = R(oo[2]) if op.startswith(("v_readlane", "v_writelane")) else []
        elif op.startswith(("buffer_", "global_", "ds_")):
            self.kind = "mem"
            self.lds_dma = bool(re.search(r"\blds\b", rest))
            oo = [x.split()[0] if i == len(o) - 1 else x for i, x in enumerate(o)]
            allr = sum((R(x) for x in oo), [])
            isload = ("load" in op or op.startswith(("ds_read", "ds_bpermute", "ds_swizzle", "ds_permute"))) and not self.lds_dma
            if isload:
                self.w = R(oo[0]); self.r = sum((R(x) for x in oo[1:]), [])
            else:
                self.r = allr
            if self.lds_dma:
                self.r.append(("m0", 0))
            self.widestore = ("store_dwordx4" in op or "store_dwordx3" in op)
            self.sdata = (R(oo[0]) if op.startswith("buffer_") else R(oo[1])) if self.widestore else []
            self.vmem = not op.startswith("ds_")
        elif op.startswith("s_"):
            self.kind = "salu"
            if op in ("s_nop",):
                self.kind = "nop"; self.n = int(o[0], 0) + 1
            elif o and not op.startswith(("s_cmp", "s_cbranch", "s_branch", "s_waitcnt", "s_barrier", "s_sleep", "s_setprio", "s_endpgm", "s_bitcmp")):
                self.w = R(o[0]); self.r = sum((R(x) for x in o[1:]), [])
                if "saveexec" in op:
                    self.w += [("exec", 0)]

    def states(self):
        return self.n if self.kind == "nop" else 1


def need(prev, cur):
    n = 0
    pw, cr, cw = set(prev.w), set(cur.r), set(cur.w)
    vg = lambda s: {x for x in s if x[0] in "va"}
    sg = lambda s: {x for x in s if x[0] == "s" or x[0] == "vcc"}
    if prev.kind in ("valu", "permlane"):
        if cur.kind == "mfma" and vg(pw) & cr:
            n = max(n, 2)
        if cur.kind == "valu":
            if cur.dpp and vg(pw) & cr:
                n = max(n, 2)
            if cur.rdlane and vg(pw) & cr:
                n = max(n, 1)
            if prev.kind == "valu" and prev.trans and not cur.trans and pw & cr:
                n = max(n, 1)
            if sg(pw) & cr:
                n = max(n, 2)
            if sg(pw) & set(cur.lanesel):
                n = max(n, 4)
        if cur.kind == "permlane" and vg(pw) & cr:
            n = max(n, 2)
        if cur.kind == "mem" and sg(pw) & cr:
            n = max(n, 5)
        if prev.kind == "valu" and prev.trans and cur.kind in ("mfma", "permlane", "mem") and pw & cr:
            n = max(n, 2 if cur.kind != "mem" else 1)
    if prev.kind == "mfma":
        p = prev.passes
        big = {4: 8, 8: 12}[p]
        if cur.kind == "mfma":
            if pw & (set(cur.mA) | set(cur.mB)):
                n = max(n, big)
            if pw & set(cur.mC):
                if list(prev.w) == list(cur.mC) and cur.passes == p:
                    pass
                else:
                    n = max(n, {4: 6, 8: 10}[p])
            elif pw & cw:
                n = max(n, big)
        elif cur.kind in ("valu", "permlane", "mem"):
            if pw & (cr | cw):
                n = max(n, big)
            if cur.kind in ("valu", "permlane") and set(prev.mC) & cw:
                n = max(n, {4: 3, 8: 7}[p])
            if cur.kind == "mem" and set(prev.mC) & cw:
                n = max(n, big)
    if prev.kind == "salu":
        if ("m0", 0) in pw and cur.kind == "mem" and getattr(cur, "lds_dma", False):
            n = max(n, 1)
        if ("exec", 0) in pw and cur.kind == "mfma":
            n = max(n, 1)
    if prev.kind == "mem" and getattr(prev, "widestore", False):
        if set(prev.sdata) & cw:
            n = max(n, 2)
    return n


def _once(lines, snaps):
    out = []
    hists = [[]]
    newsnaps = {}
    nins = 0
    for line in lines:
        t = line.split(";")[0].strip()
        if not t or t.startswith("."):
            out.append(line)
            continue
        if t.endswith(":"):
            lab = t[:-1]
            for h in snaps.get(lab, []) + newsnaps.get(lab, []):
                hists.append(list(h))
            out.append(line)
            continue
        cur = Ins(line)
        pad = 0
        for hist in hists:
            dist = 0
            for prev in reversed(hist):
                k = need(prev, cur)
                if k > dist:
                    pad = max(pad, k - dist)
                dist += prev.states()
                if dist >= 20:
                    break
        while pad > 0:
            k = min(pad, 16)
            nop = "    s_nop %d" % (k - 1)
            out.append(nop + "  ; hz")
            for hist in hists:
                hist.append(Ins(nop))
            pad -= k
            nins += 1
        out.append(line)
        for hist in hists:
            hist.append(cur)
        if cur.op.startswith(("s_cbranch", "s_branch")):
            for hist in hists:
                newsnaps.setdefault(cur.ops[0], []).append(list(hist[-22:]))
        if cur.op in ("s_branch", "s_endpgm", "s_setpc_b64"):
            hists = [[]]
        seen = set(); hh = []
        for hist in hists:
            hist = hist[-22:]
            key = tuple(id(x) for x in hist)
            if key not in seen:
                seen.add(key); hh.append(hist)
        hists = hh
    return out, newsnaps, nins


def fix(lines, verbose=False):
    snaps = {}
    total = 0
    for it in range(6):
        lines, snaps, n = _once(lines, snaps)
        total += n
        if n == 0 and it > 0:
            break
    if verbose:
        print("hazard nops inserted:", total)
    return lines
```

```python
import sys, struct
from asmlib import *
import hazard

def f2u(x):
    return struct.unpack("<I", struct.pack("<f", x))[0]

PPITCH = 0x78000
OB, XP, YP, HB, ST = 0x0, 0x40000, 0x50000, 0x60000, 0x68000
QB0 = 0x100000
STAMP_OFF = 0x10000000
L_RED = 0
L_QL = L_RED + 16384
L_XL0 = L_QL + 8704
L_XL1 = L_XL0 + 1792
L_SL0 = L_XL1 + 1792
L_SL1 = L_SL0 + 128
L_STA = L_SL1 + 128
L_RED2 = L_STA + 128
L_WD = L_RED2 + 4096
L_WO = L_WD + 7168
L_WX = L_WO + 32768
L_END = L_WX + 57344
sK, sV, sWS, sWq, sWo, sWg, sWu, sWd, sX, sOut, sDbg = 12, 16, 20, 24, 28, 32, 36, 40, 44, 48, 52
sKV0, sQoff, sPass, sStamp = 72, 73, 74, 75
sDbgP = 76
sMask = 80
sx, sr, sw, sPO, sFast, sBud = 96, 97, 98, 99, 100, 101
vL, vG, vN, vSt = 0, 1, 2, 3
vXres, vCs, vSel = 4, 8, 12
VF0, VF1, VS = 40, 72, 104
aK, aW = 0, 64

def rng(p, a, n):
    return "%s[%d:%d]" % (p, a, a + n - 1) if n > 1 else "%s%d" % (p, a)
def v(a, n=1): return rng("v", a, n)
def ac(a, n=1): return rng("a", a, n)
def s(a, n=1): return rng("s", a, n)


class Gen:
    def __init__(self, stamps=False, cfg=None):
        self.a = Asm()
        self.stamps = stamps
        self.cfg = dict(kwait=14, d_x=0, d_y=0, d_r=0, fast=True)
        if cfg: self.cfg.update(cfg)

    def stamp(self, i):
        if not self.stamps: return
        a = self.a
        a("s_memrealtime s[78:79]")
        a("s_add_u32 s3, s%d, %d" % (sStamp, i))
        a("s_waitcnt lgkmcnt(0)")
        a("s_mov_b32 m0, s3")
        a("s_nop 0")
        a("v_writelane_b32 v%d, s78, m0" % vSt)

    def bf16r(self, d, src):
        a = self.a
        a("v_cvt_pk_bf16_f32 %s, %s, %s" % (v(d), v(src), v(src)))
        a("v_lshlrev_b32 %s, 16, %s" % (v(d), v(d)))

    def unpack(self, d0, src):
        a = self.a
        a("v_lshlrev_b32 %s, 16, %s" % (v(d0), v(src)))
        a("v_and_b32 %s, 0xffff0000, %s" % (v(d0 + 1), v(src)))

    def rowred(self, op, r, t, steps=(16, 32)):
        a = self.a
        for st in steps:
            a("v_mov_b32 %s, %s" % (v(t), v(r)))
            a("v_permlane%d_swap_b32 %s, %s" % (st, v(r), v(t)))
            a("%s %s, %s, %s" % (op, v(r), v(r), v(t)))

    def dpp(self, op, d, s0, s1, ctrl):
        self.a("%s_dpp %s, %s, %s %s row_mask:0xf bank_mask:0xf" % (op, v(d), v(s0), v(s1), ctrl))

    def gather(self, loads, tmp, after=0, issue=True, between=None, execmask=None):
        a = self.a
        def ld():
            for dst, n, va, so, imm in loads:
                op = {1: "buffer_load_dword", 2: "buffer_load_dwordx2", 4: "buffer_load_dwordx4"}[n]
                a("%s %s, %s, %s, %s offen offset:%d sc1" % (op, v(dst, n), v(va), s(sWS, 4), s(so), imm))
        if execmask: a("s_mov_b64 exec, %s" % execmask)
        if issue: ld()
        if execmask: a("s_mov_b64 exec, -1")
        if between: between()
        L = a.newlabel("Lg")
        a("s_waitcnt vmcnt(%d)" % after)
        a.label(L)
        regs = [d + i for d, n, _, _, _ in loads for i in range(n)]
        if execmask: a("s_mov_b64 exec, %s" % execmask)
        if len(regs) >= 3:
            a("v_max3_u32 %s, %s, %s, %s" % (v(tmp), v(regs[0]), v(regs[1]), v(regs[2]))); rest = regs[3:]
        else:
            a("v_max_u32 %s, %s, %s" % (v(tmp), v(regs[0]), v(regs[1]))); rest = regs[2:]
        while rest:
            if len(rest) >= 2:
                a("v_max3_u32 %s, %s, %s, %s" % (v(tmp), v(tmp), v(rest[0]), v(rest[1]))); rest = rest[2:]
            else:
                a("v_max_u32 %s, %s, %s" % (v(tmp), v(tmp), v(rest[0]))); rest = []
        a("v_cmp_eq_u32 vcc, -1, %s" % v(tmp))
        a("s_cbranch_vccz %s_ok" % L)
        a("s_sub_u32 s%d, s%d, 1" % (sBud, sBud))
        a("s_cbranch_scc1 %s_to" % L)
        a("s_mov_b64 exec, vcc")
        ld()
        a("s_mov_b64 exec, -1")
        a("s_waitcnt vmcnt(0)")
        a("s_branch %s" % L)
        a.label(L + "_to")
        a("s_mov_b32 s%d, 0" % sBud)
        a.label(L + "_ok")
        if execmask: a("s_mov_b64 exec, -1")

    def intra_store(self, fn):
        a = self.a
        if not self.cfg["fast"]:
            fn(" sc1"); return
        L = a.newlabel("Ls")
        a("s_cmp_eq_u32 s%d, 0" % sFast)
        a("s_cbranch_scc1 %s_slow" % L)
        fn("")
        a("s_branch %s_done" % L)
        a.label(L + "_slow")
        fn(" sc1")
        a.label(L + "_done")

    def dma(self, srd, vaddr, soff_base, soff_step, lds_base, n, first=0):
        a = self.a
        a("s_mul_i32 s3, s%d, %d" % (sw, n * soff_step))
        a("s_add_u32 s3, s3, s%d" % soff_base)
        a("s_mul_i32 s4, s%d, %d" % (sw, n * 1024))
        a("s_add_u32 s4, s4, %d" % lds_base)
        for i in range(n):
            a("s_mov_b32 m0, s4")
            if i + 1 < n:
                a("s_add_u32 s4, s4, 1024")
            else:
                a("s_nop 0")
            a("buffer_load_dwordx4 %s, %s, s3 offen nt lds" % (v(vaddr), s(srd, 4)))
            if i + 1 < n:
                a("s_add_u32 s3, s3, %d" % soff_step)

    def prologue(self):
        a = self.a
        a("s_cmp_ge_u32 s2, 256")
        a("s_cbranch_scc1 L_end")
        a("s_load_dwordx16 s[56:71], s[0:1], 0")
        a("s_load_dwordx8 s[72:79], s[0:1], 64")
        a("v_lshrrev_b32 v1, 6, v0")
        a("v_lshlrev_b32 v16, 3, v0")
        a("v_readfirstlane_b32 s%d, v1" % sw)
        a("v_and_b32 v0, 63, v0")
        a("v_lshrrev_b32 v%d, 4, v0" % vG)
        a("v_and_b32 v%d, 15, v0" % vN)
        a("v_mov_b32 v%d, 0" % vSt)
        a("s_and_b32 s%d, s2, 7" % sx)
        a("s_lshr_b32 s%d, s2, 3" % sr)
        a("v_lshlrev_b32 v17, 9, v%d" % vN)
        a("v_lshl_add_u32 v17, v%d, 4, v17" % vG)
        a("v_lshlrev_b32 v18, 4, v%d" % vN)
        a("v_lshl_add_u32 v18, v%d, 11, v18" % vG)
        a("v_lshrrev_b32 v19, 3, v0")
        a("v_lshlrev_b32 v19, 13, v19")
        a("v_and_b32 v20, 7, v0")
        a("v_lshl_add_u32 v19, v20, 4, v19")
        a("v_mov_b32 v22, -1")
        a("v_mov_b32 v23, -1")
        a("s_waitcnt lgkmcnt(0)")
        srds = [(sX, 56, 7168), (sK, 58, 1 << 27), (sV, 60, 1 << 27), (sWq, 62, 448 * 8192), (sWo, 64, 4096 * 896),
                (sWg, 68, 448 * 3584), (sWu, 70, 448 * 3584), (sWd, 72, 1792 * 896), (sOut, 74, 7168), (sDbg, 76, 256),
                (sWS, 78, 1 << 29)]
        order = [10, 3, 1, 2, 0, 4, 5, 6, 7, 8, 9]
        def mk(i):
            d, src, n = srds[i]
            a("s_mov_b32 s%d, s%d" % (d, src))
            a("s_mov_b32 s%d, s%d" % (d + 1, src + 1))
            a("s_mov_b32 s%d, 0x%x" % (d + 2, n))
            a("s_mov_b32 s%d, 0x00020000" % (d + 3))
        for i in order: mk(i)
        a("s_mov_b32 s%d, 0" % sStamp)
        self.stamp(0)
        a("s_lshl_b32 s3, s2, 12")
        a("buffer_store_dwordx2 v[22:23], v16, %s, s3 offen sc1" % s(sWS, 4))
        a("s_mov_b32 s%d, 0x%x" % (sQoff, QB0))
        a("s_mov_b32 s%d, 0" % sPass)
        a("s_mov_b32 s%d, 0" % sPO)
        a("s_mov_b32 s%d, 0" % sFast)
        a("s_mov_b32 s%d, 200000" % sBud)
        self.q_store_addr(21, 5)
        a("s_cmp_ge_u32 s%d, 4" % sw)
        a("s_cbranch_scc1 L_noqclr")
        a("s_mov_b32 s8, 0x00030003")
        a("s_mov_b32 s9, 0x00030003")
        a("s_mov_b64 exec, s[8:9]")
        a("buffer_store_dwordx2 v[22:23], v21, %s, s5 offen sc1" % s(sWS, 4))
        a("s_mov_b64 exec, -1")
        a.label("L_noqclr")
        a("s_and_b32 s6, s%d, 7" % sr)
        a("s_lshl_b32 s6, s6, 7")
        a("s_lshl_b32 s7, s%d, 10" % sx)
        a("s_add_u32 s6, s6, s7")
        self.dma(sWq, 19, 6, 65536, L_WX, 7)
        self.x_col_addr(24, 25)
        a("s_lshr_b32 s6, s%d, 3" % sr)
        a("s_mul_i32 s6, s6, 1792")
        a("buffer_load_dwordx2 v[28:29], v24, %s, s6 offen" % s(sX, 4))
        a("s_lshr_b32 s3, s%d, 2" % sr)
        a("s_lshl_b32 s3, s3, 3")
        a("s_add_u32 s3, s3, s%d" % sx)
        a("s_lshl_b32 s3, s3, 21")
        a("s_and_b32 s4, s%d, 3" % sr)
        a("s_lshl_b32 s4, s4, 17")
        a("s_add_u32 s3, s3, s4")
        a("s_lshl_b32 s4, s%d, 14" % sw)
        a("s_add_u32 s3, s3, s4")
        a("s_add_u32 s%d, s3, %d" % (sKV0, 3072 * 512))
        a("s_add_u32 s7, s%d, 8192" % sKV0)
        for t in range(2):
            for ks in range(8):
                a("buffer_load_dwordx4 %s, v17, %s, s%d offen offset:%d nt" % (
                    ac(aK + (t * 8 + ks) * 4, 4), s(sK, 4), sKV0 if t == 0 else 7, ks * 64))
        self.v_loads(0, VF1, 18)
        for u in range(8):
            m = (3 << (2 * u)) * 0x00010001
            a("s_mov_b32 s%d, 0x%08x" % (sMask + 2 * u, m))
            a("s_mov_b32 s%d, 0x%08x" % (sMask + 2 * u + 1, m))
        a("v_and_b32 v20, 1, v%d" % vN)
        a("v_lshlrev_b32 v20, 4, v20")
        a("v_mov_b32 v21, 0x3f80")
        a("v_lshlrev_b32 v21, v20, v21")
        a("v_bfe_u32 v20, v%d, 1, 2" % vN)
        for c in range(4):
            a("v_cmp_eq_u32 vcc, %d, v20" % c)
            a("v_cndmask_b32 v%d, 0, v21, vcc" % (vSel + c))
        a("v_mov_b32 v20, 0")
        a("v_and_b32 v21, 3, v0")
        a("v_lshlrev_b32 v21, 2, v21")
        a("ds_write_b32 v21, v20 offset:%d" % (L_SL0 + 112))
        a("ds_write_b32 v21, v20 offset:%d" % (L_SL1 + 112))
        self.stamp(1)
        a("s_waitcnt vmcnt(24) lgkmcnt(0)")
        a("s_barrier")
        self.stamp(2)
        a("s_cmp_lg_u32 s%d, 0" % sw)
        a("s_cbranch_scc1 L_noarr")
        a("s_getreg_b32 s3, hwreg(HW_REG_XCC_ID, 0, 4)")
        a("s_and_b32 s3, s3, 7")
        a("s_lshl_b32 s3, s3, 3")
        a("s_mov_b64 s[10:11], 1")
        a("s_lshl_b64 s[10:11], s[10:11], s3")
        a("v_mov_b32 v20, s10")
        a("v_mov_b32 v21, s11")
        a("s_lshl_b32 s4, s%d, 3" % sx)
        a("v_mov_b32 v22, s4")
        a("s_mov_b64 exec, 1")
        a("buffer_atomic_add_x2 v[20:21], v22, %s, 0 offen sc1" % s(sDbg, 4))
        a("s_mov_b64 exec, -1")
        a.label("L_noarr")
        a("s_cmp_ge_u32 s%d, 4" % sw)
        a("s_cbranch_scc1 L_nowq")
        a("v_lshrrev_b32 v20, 2, v%d" % vN)
        a("v_lshl_add_u32 v20, v%d, 3, v20" % vG)
        a("v_lshlrev_b32 v20, 7, v20")
        a("v_and_b32 v21, 3, v%d" % vN)
        a("v_lshl_add_u32 v20, v21, 3, v20")
        a("s_lshl_b32 s3, s%d, 5" % sw)
        a("v_add_u32 v20, s3, v20")
        self.w_operands(20, L_WX, 128)
        a.label("L_nowq")

    def w_operands(self, va, base, pitch):
        a = self.a
        a("v_add_u32 %s, %d, %s" % (v(va), base, v(va)))
        for ks in range(14):
            for hh in range(2):
                a("ds_read_b64_tr_b16 %s, %s offset:%d" % (ac(aW + ks * 4 + hh * 2, 2), v(va), (32 * ks + 4 * hh) * pitch))
        for c in range(4):
            a("v_mov_b32 v%d, 0x3f803f80" % (32 + c))
        a("s_waitcnt lgkmcnt(0)")
        for ks in range(14):
            a("v_mfma_f32_16x16x32_bf16 %s, %s, v[32:35], %s" % (v(vCs, 4), ac(aW + ks * 4, 4), "0" if ks == 0 else v(vCs, 4)))

    def v_loads(self, hf, dst, va):
        a = self.a
        a("s_add_u32 s7, s%d, 8192" % sKV0)
        for j in range(8):
            a("buffer_load_dwordx4 %s, %s, %s, s%d offen offset:%d nt" % (
                v(dst + 4 * j, 4), v(va), s(sV, 4), sKV0 if j < 4 else 7, (j & 3) * 512 + hf * 256))

    def q_store_addr(self, vd, sd):
        a = self.a
        a("v_and_b32 %s, 1, v%d" % (v(vd), vN))
        a("v_lshlrev_b32 %s, 10, %s" % (v(vd), v(vd)))
        a("v_lshl_add_u32 %s, v%d, 3, %s" % (v(vd), vG, v(vd)))
        a("s_lshl_b32 s%d, s%d, 13" % (sd, sx))
        a("s_add_u32 s%d, s%d, s%d" % (sd, sd, sQoff))
        a("s_lshr_b32 s3, s%d, 3" % sr)
        a("s_lshl_b32 s3, s3, 11")
        a("s_add_u32 s%d, s%d, s3" % (sd, sd))
        a("s_and_b32 s3, s%d, 7" % sr)
        a("s_lshl_b32 s3, s3, 7")
        a("s_add_u32 s%d, s%d, s3" % (sd, sd))
        a("s_and_b32 s3, s%d, 3" % sw)
        a("s_lshl_b32 s3, s3, 5")
        a("s_add_u32 s%d, s%d, s3" % (sd, sd))

    def x_col_addr(self, vd, vt):
        a = self.a
        a("v_lshrrev_b32 %s, 2, v%d" % (v(vd), vN))
        a("v_lshlrev_b32 %s, 5, %s" % (v(vd), v(vd)))
        a("v_and_b32 %s, 1, v%d" % (v(vt), vN))
        a("v_lshl_add_u32 %s, %s, 4, %s" % (v(vd), v(vt), v(vd)))
        a("v_and_b32 %s, 1, v%d" % (v(vt), vG))
        a("v_lshl_add_u32 %s, %s, 3, %s" % (v(vd), v(vt), v(vd)))
        a("v_bfe_u32 %s, v%d, 1, 1" % (v(vt), vN))
        a("v_mul_u32_u24 %s, 896, %s" % (v(vt), v(vt)))
        a("v_add_u32 %s, %s, %s" % (v(vd), v(vd), v(vt)))
        a("s_lshl_b32 s3, s%d, 7" % sw)
        a("v_add_u32 %s, s3, %s" % (v(vd), v(vd)))

    def x_gather_reduce(self, region, delay):
        a = self.a
        self.x_col_addr(24, 25)
        a("v_mul_u32_u24 v26, 3584, v%d" % vG)
        a("v_lshrrev_b32 v25, 2, v%d" % vN)
        a("v_lshl_add_u32 v26, v25, 7, v26")
        a("v_and_b32 v25, 3, v%d" % vN)
        a("v_lshl_add_u32 v26, v25, 4, v26")
        a("s_lshr_b32 s3, s%d, 4" % sr)
        a("s_mul_i32 s5, s3, 28672")
        a("s_add_u32 s5, s5, s%d" % sPO)
        a("s_bfe_u32 s3, s%d, 0x10003" % sr)
        a("s_lshl_b32 s3, s3, 6")
        a("s_add_u32 s5, s5, s3")
        a("s_lshl_b32 s3, s%d, 9" % sw)
        a("s_add_u32 s5, s5, s3")
        a("s_add_u32 s5, s5, 0x%x" % (region & 0xffffffff))
        a("s_add_u32 s6, s5, %d" % (4 * 3584))
        if delay:
            a("s_sleep %d" % delay)
        self.gather([(VS, 4, 26, 5, 0), (VS + 4, 4, 26, 6, 0)], 25)
        a("v_mfma_f32_16x16x32_bf16 v[16:19], %s, %s, 0" % (v(vSel, 4), v(VS, 4)))
        a("v_mfma_f32_16x16x32_bf16 v[16:19], %s, %s, v[16:19]" % (v(vSel, 4), v(VS + 4, 4)))
        a("v_cvt_pk_bf16_f32 v28, v16, v17")
        a("v_cvt_pk_bf16_f32 v29, v18, v19")
        self.unpack(16, 28)
        self.unpack(18, 29)
        for i in range(4):
            a("v_add_f32 v%d, v%d, v%d" % (16 + i, 16 + i, vXres + i))
        a("v_cvt_pk_bf16_f32 v28, v16, v17")
        a("v_cvt_pk_bf16_f32 v29, v18, v19")

    def x_publish(self, XL, SL):
        a = self.a
        a("ds_write_b64 v24, v[28:29] offset:%d" % XL)
        self.unpack(vXres, 28)
        self.unpack(vXres + 2, 29)
        a("v_add_f32 v16, v%d, v%d" % (vXres, vXres + 1))
        a("v_mul_f32 v17, v%d, v%d" % (vXres, vXres))
        a("v_add_f32 v18, v%d, v%d" % (vXres + 2, vXres + 3))
        a("v_mul_f32 v19, v%d, v%d" % (vXres + 2, vXres + 2))
        a("v_fmac_f32 v17, v%d, v%d" % (vXres + 1, vXres + 1))
        a("v_fmac_f32 v19, v%d, v%d" % (vXres + 3, vXres + 3))
        a("v_add_f32 v16, v16, v18")
        a("v_add_f32 v17, v17, v19")
        a("v_and_b32 v20, 2, v%d" % vN)
        a("v_lshlrev_b32 v20, 2, v20")
        a("s_lshl_b32 s3, s%d, 4" % sw)
        a("v_add_u32 v20, s3, v20")
        for ctrl in ("quad_perm:[1,0,3,2]", "row_ror:4", "row_ror:8"):
            self.dpp("v_add_f32", 16, 16, 16, ctrl)
            self.dpp("v_add_f32", 17, 17, 17, ctrl)
        a("v_mov_b32 v18, v16")
        a("v_mov_b32 v19, v17")
        a("v_permlane16_swap_b32 v16, v18")
        a("v_permlane16_swap_b32 v17, v19")
        a("v_add_f32 v16, v16, v18")
        a("v_add_f32 v17, v17, v19")
        a("s_mov_b64 exec, 5")
        a("ds_write_b64 v20, v[16:17] offset:%d" % SL)
        a("s_mov_b64 exec, -1")

    def x_main(self, XL, SL):
        a = self.a
        a("ds_read_b64 v[20:21], v31 offset:%d" % SL)
        for ks in range(8):
            a("ds_read_b128 %s, v30 offset:%d" % (v(VS + 4 * ks, 4), XL + ks * 64))
        stat = []
        for ctrl in ("quad_perm:[2,3,0,1]", "row_ror:4", "row_ror:8"):
            stat.append("v_add_f32_dpp v20, v20, v20 %s row_mask:0xf bank_mask:0xf" % ctrl)
            stat.append("v_add_f32_dpp v21, v21, v21 %s row_mask:0xf bank_mask:0xf" % ctrl)
        inv = "0x%08x" % f2u(1.0 / 448.0)
        stat += ["v_mul_f32 v20, %s, v20" % inv,
                 "v_mul_f32 v21, %s, v21" % inv,
                 "v_fma_f32 v21, -v20, v20, v21",
                 "v_cvt_pk_bf16_f32 v20, v20, v20",
                 "v_max_f32 v21, 0, v21",
                 "v_lshlrev_b32 v20, 16, v20",
                 "v_cvt_pk_bf16_f32 v21, v21, v21",
                 "v_lshlrev_b32 v21, 16, v21",
                 "v_add_f32 v21, 0x%08x, v21" % f2u(1e-5),
                 "v_cvt_pk_bf16_f32 v21, v21, v21",
                 "v_lshlrev_b32 v21, 16, v21",
                 "v_sqrt_f32 v21, v21",
                 "v_cvt_pk_bf16_f32 v21, v21, v21",
                 "v_lshlrev_b32 v21, 16, v21",
                 "v_rcp_f32 v21, v21"]
        outstanding = 8
        for ks in range(14):
            nxt = min(ks + 8, 14) - ks - 1
            a("s_waitcnt lgkmcnt(%d)" % nxt)
            a("v_mfma_f32_16x16x32_bf16 v[16:19], %s, %s, %s" % (ac(aW + 4 * ks, 4), v(VS + 4 * (ks % 8), 4), "0" if ks == 0 else "v[16:19]"))
            if ks + 8 < 14:
                a("ds_read_b128 %s, v30 offset:%d" % (v(VS + 4 * (ks % 8), 4), XL + (ks + 8) * 64))
            for _ in range(2):
                if stat: a(stat.pop(0))
        assert not stat
        for i in range(4):
            a("v_fma_f32 v%d, -v20, v%d, v%d" % (16 + i, vCs + i, 16 + i))
        for i in range(4):
            a("v_mul_f32 v%d, v21, v%d" % (16 + i, 16 + i))

    def x_main_addr(self):
        a = self.a
        a("v_and_b32 v30, 1, v%d" % vN)
        a("v_mul_u32_u24 v30, 896, v30")
        a("v_lshl_add_u32 v30, v%d, 4, v30" % vG)
        a("v_lshlrev_b32 v31, 3, v%d" % vN)

    def q_stage(self, first):
        a = self.a
        L = a.newlabel("Lq")
        a("s_cmp_eq_u32 s%d, 7" % sw)
        a("s_cbranch_scc1 %s_b" % L)
        if not first:
            self.x_gather_reduce(YP - PPITCH, self.cfg["d_y"])
            self.stamp(20)
        self.x_publish(L_XL0, L_SL0)
        a.label(L + "_b")
        self.x_main_addr()
        self.q_store_addr(22, 5)
        a("s_waitcnt lgkmcnt(0)")
        a("s_barrier")
        a("s_cmp_ge_u32 s%d, 4" % sw)
        a("s_cbranch_scc1 %s_e" % L)
        self.x_main(L_XL0, L_SL0)
        a("v_cvt_pk_bf16_f32 v16, v16, v17")
        a("v_cvt_pk_bf16_f32 v17, v18, v19")
        a("v_min_u32 v16, -2, v16")
        a("v_min_u32 v17, -2, v17")
        a("s_mov_b64 exec, %s" % s(sMask, 2))
        self.intra_store(lambda p: a("buffer_store_dwordx2 v[16:17], v22, %s, s5 offen%s" % (s(sWS, 4), p)))
        a("s_mov_b64 exec, -1")
        a.label(L + "_e")

    def start_barrier(self):
        a = self.a
        a("s_cmp_lg_u32 s%d, 0" % sw)
        a("s_cbranch_scc1 L_sb_done")
        a.label("L_sb")
        a("s_load_dwordx16 s[56:71], s[%d:%d], 0 glc" % (sDbgP, sDbgP + 1))
        a("s_waitcnt lgkmcnt(0)")
        a("s_mov_b32 s4, 0")
        for gidx in range(8):
            a("s_add_u32 s3, s%d, s%d" % (56 + 2 * gidx, 57 + 2 * gidx))
            a("s_mul_i32 s3, s3, 0x01010101")
            a("s_lshr_b32 s3, s3, 24")
            a("s_add_u32 s4, s4, s3")
        a("s_cmp_eq_u32 s4, 256")
        a("s_cbranch_scc1 L_sb_done")
        a("s_sub_u32 s%d, s%d, 1" % (sBud, sBud))
        a("s_cbranch_scc1 L_sb_to")
        a("s_sleep 8")
        a("s_branch L_sb")
        a.label("L_sb_to")
        a("s_mov_b32 s%d, 0" % sBud)
        a.label("L_sb_done")
        a("s_barrier")
        a("s_lshl_b32 s3, s%d, 3" % sx)
        a("s_load_dwordx2 s[10:11], s[%d:%d], s3 glc" % (sDbgP, sDbgP + 1))
        a("s_getreg_b32 s3, hwreg(HW_REG_XCC_ID, 0, 4)")
        a("s_and_b32 s3, s3, 7")
        a("s_lshl_b32 s3, s3, 3")
        a("s_waitcnt lgkmcnt(0)")
        a("s_lshr_b64 s[10:11], s[10:11], s3")
        a("s_and_b32 s3, s10, 0xff")
        a("s_cmp_eq_u32 s3, 32")
        a("s_cselect_b32 s%d, 1, 0" % sFast)

    def q_addr(self):
        a = self.a
        a("v_lshlrev_b32 v34, 4, v0")
        a("s_lshl_b32 s5, s%d, 13" % sx)
        a("s_add_u32 s5, s5, s%d" % sQoff)
        a("s_lshr_b32 s3, s%d, 2" % sr)
        a("s_lshl_b32 s3, s3, 10")
        a("s_add_u32 s5, s5, s3")
        a("s_mul_i32 s3, s%d, 1088" % sw)
        a("v_lshrrev_b32 v35, 5, v0")
        a("v_lshl_add_u32 v35, v35, 6, v34")
        a("v_add_u32 v35, s3, v35")
        a("v_and_b32 v36, 1, v%d" % vN)
        a("v_mul_u32_u24 v36, 576, v36")
        a("v_lshl_add_u32 v36, v%d, 4, v36" % vG)
        a("v_add_u32 v36, s3, v36")

    def qk_softmax(self, QB):
        a = self.a
        a("ds_write_b128 v35, v[16:19] offset:%d" % L_QL)
        a("s_waitcnt lgkmcnt(0)")
        for ks in range(8):
            a("ds_read_b128 %s, v36 offset:%d" % (v(QB + 4 * ks, 4), L_QL + ks * 64))
        for ks in range(8):
            a("s_waitcnt lgkmcnt(%d)" % (7 - ks))
            for t in range(2):
                a("v_mfma_f32_16x16x32_bf16 %s, %s, %s, %s" % (v(20 + 4 * t, 4), ac(aK + (t * 8 + ks) * 4, 4), v(QB + 4 * ks, 4),
                                                               "0" if ks == 0 else v(20 + 4 * t, 4)))
        a("s_mov_b32 s4, 0x%08x" % f2u(1.4426950408889634 / 16.0))
        for i in range(4):
            a("v_cvt_pk_bf16_f32 v%d, v%d, v%d" % (28 + i, 20 + 2 * i, 21 + 2 * i))
        for i in range(4):
            self.unpack(20 + 2 * i, 28 + i)
        a("v_max3_f32 v32, v20, v21, v22")
        a("v_max3_f32 v33, v23, v24, v25")
        a("v_max3_f32 v32, v32, v26, v27")
        a("v_max_f32 v32, v32, v33")
        self.rowred("v_max_f32", 32, 33)
        a("v_mul_f32 v32, s4, v32")
        for i in range(8):
            a("v_fma_f32 v%d, v%d, s4, -v32" % (20 + i, 20 + i))
        for i in range(8):
            a("v_exp_f32 v%d, v%d" % (20 + i, 20 + i))
        for i in range(4):
            a("v_cvt_pk_bf16_f32 v%d, v%d, v%d" % (28 + i, 20 + 2 * i, 21 + 2 * i))
        a("v_add_f32 v33, v20, v21")
        a("v_add_f32 v22, v22, v23")
        a("v_add_f32 v24, v24, v25")
        a("v_add_f32 v26, v26, v27")
        a("v_add_f32 v33, v33, v22")
        a("v_add_f32 v24, v24, v26")
        a("v_add_f32 v33, v33, v24")
        self.rowred("v_add_f32", 33, 34)

    def transpose(self, src, dst, pairs=range(4)):
        a = self.a
        for c in pairs:
            for e in range(8):
                a("v_perm_b32 %s, %s, %s, s%d" % (v(dst + 4 * e + c), v(src + 4 * (2 * c + 1) + (e >> 1)), v(src + 4 * (2 * c) + (e >> 1)),
                                                 6 + (e & 1)))

    def pv(self, halves):
        a = self.a
        for u in range(8):
            pvr = 20 + 4 * (u & 1)
            for c in range(4):
                a("v_cndmask_b32 v%d, 0, v%d, %s" % (pvr + c, 28 + c, s(sMask + 2 * u, 2)))
            for hf in halves:
                acc = v(16, 4) if hf == 0 else v(36, 4)
                F = VF0 if hf == 0 else VF1
                a("v_mfma_f32_16x16x32_bf16 %s, %s, %s, %s" % (acc, v(F + 4 * u, 4), v(pvr, 4), "0" if u == 0 else acc))

    def weights_dma(self, which):
        a = self.a
        if which == "o":
            a("v_lshrrev_b32 v20, 2, v0")
            a("v_mul_u32_u24 v20, 896, v20")
            a("v_and_b32 v21, 3, v0")
            a("v_lshl_add_u32 v20, v21, 4, v20")
            a("s_mul_i32 s6, s%d, %d" % (sx, 512 * 896))
            a("s_and_b32 s5, s%d, 15" % sr)
            a("s_min_u32 s5, s5, 13")
            a("s_lshl_b32 s5, s5, 6")
            a("s_add_u32 s6, s6, s5")
            self.dma(sWo, 20, 6, 16 * 896, L_WO, 4)
            return 4
        if which == "gu":
            a("v_lshrrev_b32 v20, 2, v0")
            a("v_mul_u32_u24 v20, 3584, v20")
            a("v_and_b32 v21, 3, v0")
            a("v_lshl_add_u32 v20, v21, 4, v20")
            a("s_mul_i32 s6, s%d, 448" % sx)
            a("s_and_b32 s5, s%d, 7" % sr)
            a("s_min_u32 s5, s5, 6")
            a("s_lshl_b32 s5, s5, 6")
            a("s_add_u32 s6, s6, s5")
            L = a.newlabel("Lgu")
            a("s_cmp_ge_u32 s%d, 4" % sw)
            a("s_cbranch_scc1 %s_u" % L)
            self.dma(sWg, 20, 6, 16 * 3584, L_WX, 7)
            a("s_branch %s_d" % L)
            a.label(L + "_u")
            a("s_sub_u32 s6, s6, %d" % (448 * 3584))
            self.dma(sWu, 20, 6, 16 * 3584, L_WX, 7)
            a.label(L + "_d")
            return 7
        if which == "d":
            a("v_lshrrev_b32 v20, 1, v0")
            a("v_mul_u32_u24 v20, 896, v20")
            a("v_and_b32 v21, 1, v0")
            a("v_lshl_add_u32 v20, v21, 4, v20")
            a("s_mul_i32 s6, s%d, %d" % (sx, 224 * 896))
            a("s_min_u32 s5, s%d, 27" % sr)
            a("s_lshl_b32 s5, s5, 5")
            a("s_add_u32 s6, s6, s5")
            a("s_min_u32 s5, s%d, 6" % sw)
            a("s_mul_i32 s3, s5, %d" % (32 * 896))
            a("s_add_u32 s3, s3, s6")
            a("s_lshl_b32 s4, s5, 10")
            a("s_add_u32 s4, s4, %d" % L_WD)
            a("s_mov_b32 m0, s4")
            a("s_nop 0")
            a("buffer_load_dwordx4 v20, %s, s3 offen nt lds" % s(sWd, 4))
            return 1

    def attn1(self):
        a = self.a
        self.q_addr()
        a("v_lshlrev_b32 v37, 4, v%d" % vN)
        a("v_lshl_add_u32 v37, v%d, 11, v37" % vG)
        a("s_waitcnt vmcnt(%d)" % self.cfg["kwait"])
        self.stamp(5)
        cnt = [0, 0]
        def between():
            a("s_mov_b32 s10, s5")
            cnt[0] += self.weights_dma("o")
            self.v_loads(1, VS, 37)
            cnt[1] += self.weights_dma("gu")
            cnt[1] += self.weights_dma("d")
            a("s_mov_b32 s5, s10")
        self.gather([(16, 4, 34, 5, 0)], 20, after=4 + 8 + 8, between=between)
        assert cnt == [4, 8]
        self.stamp(6)
        self.qk_softmax(VF0)
        a("s_mov_b32 s6, 0x05040100")
        a("s_mov_b32 s7, 0x07060302")
        self.transpose(VF1, VF0)
        self.pv([0])
        self.stamp(7)
        for c in range(4):
            a("s_waitcnt vmcnt(%d)" % (8 + 6 - 2 * c))
            self.transpose(VS, VF1, [c])
        self.stamp(8)
        self.pv([1])

    def attn2(self):
        a = self.a
        self.q_addr()
        self.gather([(16, 4, 34, 5, 0)], 20)
        self.stamp(6)
        self.qk_softmax(VS)
        self.stamp(7)
        self.pv([0, 1])

    def attn_tail(self):
        a = self.a
        L = a.newlabel("Lat")
        a("v_lshlrev_b32 v20, 4, v0")
        a("s_lshl_b32 s3, s%d, 11" % sw)
        a("v_add_u32 v20, s3, v20")
        a("v_and_b32 v21, 1, v0")
        a("v_lshlrev_b32 v21, 6, v21")
        a("s_lshl_b32 s3, s%d, 2" % sw)
        a("v_add_u32 v21, s3, v21")
        a("s_mov_b64 exec, 3")
        a("ds_write_b32 v21, v32 offset:%d" % L_STA)
        a("ds_write_b32 v21, v33 offset:%d" % (L_STA + 32))
        a("s_mov_b64 exec, -1")
        a("ds_write_b128 v20, v[16:19] offset:%d" % L_RED)
        a("ds_write_b128 v20, v[36:39] offset:%d" % (L_RED + 1024))
        a("s_lshl_b32 s3, s%d, 6" % sw)
        a("v_add_u32 v25, s3, v0")
        a("v_lshlrev_b32 v22, 3, v25")
        a("v_bfe_u32 v26, v0, 1, 1")
        a("v_lshlrev_b32 v23, 6, v26")
        a("v_lshrrev_b32 v24, 2, v25")
        a("v_lshlrev_b32 v24, 3, v24")
        a("v_and_b32 v27, 1, v0")
        a("v_lshl_add_u32 v24, v27, 2, v24")
        a("v_lshl_add_u32 v24, v26, 9, v24")
        a("v_lshlrev_b32 v27, 3, v26")
        a("s_lshl_b32 s5, s%d, 5" % sx)
        a("s_add_u32 s5, s5, s%d" % sr)
        a("s_lshl_b32 s6, s5, 4")
        a("s_lshl_b32 s5, s5, 10")
        a("s_add_u32 s5, s5, s%d" % sPO)
        a("s_add_u32 s6, s6, s%d" % sPO)
        a("s_add_u32 s6, s6, 0x%x" % ST)
        a("s_waitcnt lgkmcnt(0)")
        a("s_barrier")
        self.stamp(9)
        a("s_cmp_ge_u32 s%d, 4" % sw)
        a("s_cbranch_scc1 %s_e" % L)
        M, Lr, D = VS, VS + 8, VS + 16
        a("ds_read_b128 %s, v23 offset:%d" % (v(M, 4), L_STA))
        a("ds_read_b128 %s, v23 offset:%d" % (v(M + 4, 4), L_STA + 16))
        a("ds_read_b128 %s, v23 offset:%d" % (v(Lr, 4), L_STA + 32))
        a("ds_read_b128 %s, v23 offset:%d" % (v(Lr + 4, 4), L_STA + 48))
        for w in range(8):
            a("ds_read_b64 %s, v22 offset:%d" % (v(D + 2 * w, 2), L_RED + 2048 * w))
        a("s_waitcnt lgkmcnt(10)")
        a("v_max3_f32 v16, %s, %s, %s" % (v(M), v(M + 1), v(M + 2)))
        a("v_max3_f32 v17, %s, %s, %s" % (v(M + 3), v(M + 4), v(M + 5)))
        a("v_max3_f32 v16, v16, %s, %s" % (v(M + 6), v(M + 7)))
        a("v_max_f32 v16, v16, v17")
        for w in range(8):
            a("v_sub_f32 %s, %s, v16" % (v(M + w), v(M + w)))
        for w in range(8):
            a("v_exp_f32 %s, %s" % (v(M + w), v(M + w)))
        a("s_waitcnt lgkmcnt(0)")
        a("v_mul_f32 v18, %s, %s" % (v(M), v(D)))
        a("v_mul_f32 v19, %s, %s" % (v(M), v(D + 1)))
        a("v_mul_f32 v17, %s, %s" % (v(M), v(Lr)))
        for w in range(1, 8):
            a("v_fmac_f32 v18, %s, %s" % (v(M + w), v(D + 2 * w)))
            a("v_fmac_f32 v19, %s, %s" % (v(M + w), v(D + 2 * w + 1)))
            a("v_fmac_f32 v17, %s, %s" % (v(M + w), v(Lr + w)))
        a("v_cvt_pk_bf16_f32 v18, v18, v19")
        a("v_min_u32 v18, -2, v18")
        a("v_min_u32 v16, -2, v16")
        a("v_min_u32 v17, -2, v17")
        a("s_cmp_eq_u32 s%d, 0" % sw)
        a("s_cselect_b64 s[8:9], 5, 0")
        def st(p):
            a("buffer_store_dword v18, v24, %s, s5 offen%s" % (s(sWS, 4), p))
            LL = a.newlabel("Lst")
            a("s_cmp_lg_u32 s%d, 0" % sw)
            a("s_cbranch_scc1 %s" % LL)
            a("s_mov_b64 exec, 5")
            a("buffer_store_dwordx2 v[16:17], v27, %s, s6 offen%s" % (s(sWS, 4), p))
            a("s_mov_b64 exec, -1")
            a.label(LL)
        self.intra_store(st)
        a.label(L + "_e")
        self.stamp(10)

    def o_stage(self):
        a = self.a
        L = a.newlabel("Lo")
        a("s_and_b32 s7, s%d, 15" % sr)
        a("s_cmp_ge_u32 s7, 14")
        a("s_cbranch_scc1 %s_skip" % L)
        W, Dt = VS, VS + 16
        a("v_lshrrev_b32 v20, 2, v%d" % vN)
        a("v_lshlrev_b32 v20, 9, v20")
        a("v_lshl_add_u32 v20, v%d, 7, v20" % vG)
        a("v_and_b32 v21, 3, v%d" % vN)
        a("v_lshl_add_u32 v20, v21, 3, v20")
        a("s_lshl_b32 s3, s%d, 12" % sw)
        a("v_add_u32 v20, s3, v20")
        for kk in range(2):
            for t in range(2):
                for hh in range(2):
                    a("ds_read_b64_tr_b16 %s, v20 offset:%d" % (v(W + (kk * 2 + t) * 4 + hh * 2, 2), L_WO + (32 * kk + hh) * 64 + t * 32))
        a("v_lshlrev_b32 v22, 10, v%d" % vN)
        a("v_lshl_add_u32 v22, v%d, 4, v22" % vG)
        a("v_lshlrev_b32 v23, 4, v%d" % vN)
        a("s_lshl_b32 s3, s%d, 5" % sx)
        a("s_and_b32 s4, s%d, 16" % sr)
        a("s_add_u32 s3, s3, s4")
        a("s_lshl_b32 s5, s3, 10")
        a("s_lshl_b32 s4, s%d, 7" % sw)
        a("s_add_u32 s5, s5, s4")
        a("s_add_u32 s5, s5, s%d" % sPO)
        a("s_lshl_b32 s6, s3, 4")
        a("s_lshr_b32 s4, s%d, 2" % sw)
        a("s_lshl_b32 s4, s4, 3")
        a("s_add_u32 s6, s6, s4")
        a("s_add_u32 s6, s6, s%d" % sPO)
        a("s_add_u32 s6, s6, 0x%x" % ST)
        a("v_lshrrev_b32 v24, 2, v%d" % vN)
        a("v_lshlrev_b32 v24, 6, v24")
        a("v_lshl_add_u32 v24, v%d, 4, v24" % vG)
        a("s_lshl_b32 s3, s%d, 9" % sw)
        a("v_add_u32 v24, s3, v24")
        a("v_lshlrev_b32 v25, 3, v0")
        a("v_lshlrev_b32 v26, 2, v0")
        a("s_waitcnt lgkmcnt(0)")
        self.gather([(Dt + 8, 2, 23, 6, 0), (Dt, 4, 22, 5, 0), (Dt + 4, 4, 22, 5, 64)], 21)
        self.stamp(11)
        for kk in range(2):
            for t in range(2):
                acc = v(16, 4) if t == 0 else v(36, 4)
                a("v_mfma_f32_16x16x32_bf16 %s, %s, %s, %s" % (acc, v(W + (kk * 2 + t) * 4, 4), v(Dt + 4 * kk, 4), "0" if kk == 0 else acc))
        m, l = Dt + 8, Dt + 9
        self.dpp("v_max_f32", 28, m, m, "quad_perm:[1,0,3,2]")
        self.dpp("v_max_f32", 28, 28, 28, "quad_perm:[2,3,0,1]")
        a("v_sub_f32 v28, %s, v28" % v(m))
        a("v_exp_f32 v28, v28")
        a("v_mul_f32 v29, v28, %s" % v(l))
        self.dpp("v_add_f32", 29, 29, 29, "quad_perm:[1,0,3,2]")
        self.dpp("v_add_f32", 29, 29, 29, "quad_perm:[2,3,0,1]")
        a("v_rcp_f32 v29, v29")
        a("v_mul_f32 v28, v28, v29")
        accs = [16, 17, 18, 19, 36, 37, 38, 39]
        for r_ in accs:
            a("v_mul_f32 v%d, v28, v%d" % (r_, r_))
        for ctrl in ("quad_perm:[1,0,3,2]", "quad_perm:[2,3,0,1]"):
            for r_ in accs:
                self.dpp("v_add_f32", r_, r_, r_, ctrl)
        a("s_mov_b32 s8, 0x11111111")
        a("s_mov_b32 s9, 0x11111111")
        a("s_mov_b64 exec, s[8:9]")
        a("ds_write_b128 v24, v[16:19] offset:%d" % L_RED2)
        a("ds_write_b128 v24, v[36:39] offset:%d" % (L_RED2 + 256))
        a("s_mov_b64 exec, -1")
        a("s_lshr_b32 s3, s%d, 4" % sr)
        a("s_mul_i32 s5, s3, 28672")
        a("s_mul_i32 s3, s%d, 3584" % sx)
        a("s_add_u32 s5, s5, s3")
        a("s_lshl_b32 s3, s7, 8")
        a("s_add_u32 s5, s5, s3")
        a("s_add_u32 s5, s5, s%d" % sPO)
        a("s_add_u32 s5, s5, 0x%x" % XP)
        a("s_waitcnt lgkmcnt(0)")
        a("s_barrier")
        a("s_cmp_lg_u32 s%d, 7" % sw)
        a("s_cbranch_scc1 %s_e" % L)
        for w in range(8):
            a("ds_read_b64 %s, v25 offset:%d" % (v(VS + 2 * w, 2), L_RED2 + 512 * w))
        a("s_waitcnt lgkmcnt(4)")
        a("v_pk_add_f32 %s, %s, %s" % (v(VS, 2), v(VS, 2), v(VS + 2, 2)))
        a("v_pk_add_f32 %s, %s, %s" % (v(VS + 4, 2), v(VS + 4, 2), v(VS + 6, 2)))
        a("s_waitcnt lgkmcnt(0)")
        a("v_pk_add_f32 %s, %s, %s" % (v(VS + 8, 2), v(VS + 8, 2), v(VS + 10, 2)))
        a("v_pk_add_f32 %s, %s, %s" % (v(VS + 12, 2), v(VS + 12, 2), v(VS + 14, 2)))
        a("v_pk_add_f32 %s, %s, %s" % (v(VS, 2), v(VS, 2), v(VS + 4, 2)))
        a("v_pk_add_f32 %s, %s, %s" % (v(VS + 8, 2), v(VS + 8, 2), v(VS + 12, 2)))
        a("v_pk_add_f32 %s, %s, %s" % (v(VS, 2), v(VS, 2), v(VS + 8, 2)))
        a("v_cvt_pk_bf16_f32 v16, %s, %s" % (v(VS), v(VS + 1)))
        a("v_min_u32 v16, -2, v16")
        a("buffer_store_dword v16, v26, %s, s5 offen sc1" % s(sWS, 4))
        a("s_branch %s_e" % L)
        a.label(L + "_skip")
        a("s_waitcnt vmcnt(0)")
        a("s_barrier")
        a.label(L + "_e")
        self.stamp(12)

    def g_weights(self):
        a = self.a
        a("s_cmp_lt_u32 s%d, 4" % sw)
        a("s_cbranch_scc1 L_nogu")
        a("v_lshrrev_b32 v20, 2, v%d" % vN)
        a("v_lshl_add_u32 v20, v%d, 3, v20" % vG)
        a("v_lshlrev_b32 v20, 6, v20")
        a("v_and_b32 v21, 1, v%d" % vN)
        a("v_lshl_add_u32 v20, v21, 3, v20")
        a("v_bfe_u32 v21, v%d, 1, 1" % vN)
        a("v_mul_u32_u24 v21, %d, v21" % (448 * 64))
        a("v_add_u32 v20, v20, v21")
        a("s_and_b32 s3, s%d, 3" % sw)
        a("s_lshl_b32 s3, s3, 4")
        a("v_add_u32 v20, s3, v20")
        self.w_operands(20, L_WX, 64)
        a.label("L_nogu")

    def g_stage(self):
        a = self.a
        L = a.newlabel("Lgs")
        a("s_cmp_eq_u32 s%d, 7" % sw)
        a("s_cbranch_scc1 %s_b" % L)
        self.x_gather_reduce(XP, self.cfg["d_x"])
        self.stamp(13)
        self.x_publish(L_XL1, L_SL1)
        a.label(L + "_b")
        self.x_main_addr()
        a("v_and_b32 v22, 1, v%d" % vN)
        a("v_lshlrev_b32 v22, 9, v22")
        a("v_and_b32 v23, 1, v%d" % vG)
        a("v_lshl_add_u32 v22, v23, 3, v22")
        a("v_lshrrev_b32 v23, 1, v%d" % vG)
        a("v_lshl_add_u32 v22, v23, 2, v22")
        a("s_lshl_b32 s5, s%d, 12" % sx)
        a("s_lshr_b32 s3, s%d, 3" % sr)
        a("s_lshl_b32 s3, s3, 10")
        a("s_add_u32 s5, s5, s3")
        a("s_and_b32 s7, s%d, 7" % sr)
        a("s_lshl_b32 s3, s7, 6")
        a("s_add_u32 s5, s5, s3")
        a("s_and_b32 s3, s%d, 3" % sw)
        a("s_lshl_b32 s3, s3, 4")
        a("s_add_u32 s5, s5, s3")
        a("s_add_u32 s5, s5, s%d" % sPO)
        a("s_add_u32 s5, s5, 0x%x" % HB)
        a("s_waitcnt lgkmcnt(0)")
        a("s_barrier")
        self.stamp(14)
        a("s_cmp_lt_u32 s%d, 4" % sw)
        a("s_cbranch_scc1 %s_e" % L)
        a("s_cmp_eq_u32 s7, 7")
        a("s_cbranch_scc1 %s_e" % L)
        self.x_main(L_XL1, L_SL1)
        a("v_permlane32_swap_b32 v16, v18")
        a("v_permlane32_swap_b32 v17, v19")
        a("v_cvt_pk_bf16_f32 v20, v16, v17")
        a("v_cvt_pk_bf16_f32 v21, v18, v19")
        self.unpack(16, 20)
        self.unpack(18, 21)
        nl = "0x%08x" % f2u(-1.4426950408889634)
        a("v_mul_f32 v16, %s, v16" % nl)
        a("v_mul_f32 v17, %s, v17" % nl)
        a("v_exp_f32 v16, v16")
        a("v_exp_f32 v17, v17")
        a("v_add_f32 v16, 1.0, v16")
        a("v_add_f32 v17, 1.0, v17")
        a("v_rcp_f32 v16, v16")
        a("v_rcp_f32 v17, v17")
        a("v_cvt_pk_bf16_f32 v20, v16, v17")
        self.unpack(16, 20)
        a("v_mul_f32 v16, v16, v18")
        a("v_mul_f32 v17, v17, v19")
        a("v_cvt_pk_bf16_f32 v16, v16, v17")
        a("v_min_u32 v16, -2, v16")
        a("s_mov_b64 exec, %s" % s(sMask, 2))
        self.intra_store(lambda p: a("buffer_store_dword v16, v22, %s, s5 offen%s" % (s(sWS, 4), p)))
        a("s_mov_b64 exec, -1")
        a.label(L + "_e")
        self.stamp(15)

    def d_stage(self):
        a = self.a
        L = a.newlabel("Ld")
        a("s_cmp_lg_u32 s%d, 0" % sw)
        a("s_cbranch_scc1 %s_e" % L)
        a("s_cmp_ge_u32 s%d, 28" % sr)
        a("s_cbranch_scc1 %s_e" % L)
        W = VS
        a("v_lshrrev_b32 v16, 2, v%d" % vN)
        a("v_lshl_add_u32 v16, v%d, 3, v16" % vG)
        a("v_lshlrev_b32 v16, 5, v16")
        a("v_and_b32 v17, 3, v%d" % vN)
        a("v_lshl_add_u32 v16, v17, 3, v16")
        for ks in range(7):
            for hh in range(2):
                a("ds_read_b64_tr_b16 %s, v16 offset:%d" % (v(W + 4 * ks + 2 * hh, 2), L_WD + (32 * ks + 4 * hh) * 32))
        A0, A1, SA, T = VS + 28, VS + 29, VS + 30, VS + 31
        a("v_and_b32 %s, 7, v%d" % (v(A1), vN))
        a("v_lshlrev_b32 %s, 9, %s" % (v(A1), v(A1)))
        a("v_lshl_add_u32 %s, v%d, 4, %s" % (v(A1), vG, v(A1)))
        a("v_lshrrev_b32 %s, 3, v%d" % (v(A0), vN))
        a("v_lshl_add_u32 %s, %s, 6, %s" % (v(A0), v(A0), v(A1)))
        a("s_lshl_b32 s5, s%d, 12" % sx)
        a("s_add_u32 s5, s5, s%d" % sPO)
        a("s_add_u32 s5, s5, 0x%x" % HB)
        a("v_bfe_u32 %s, v%d, 2, 1" % (v(SA), vN))
        a("v_mul_u32_u24 %s, 28672, %s" % (v(SA), v(SA)))
        a("v_and_b32 %s, 3, v%d" % (v(T), vN))
        a("v_lshl_add_u32 %s, %s, 5, %s" % (v(SA), v(T), v(SA)))
        a("v_lshl_add_u32 %s, v%d, 3, %s" % (v(SA), vG, v(SA)))
        a("s_mul_i32 s6, s%d, 3584" % sx)
        a("s_lshl_b32 s3, s%d, 7" % sr)
        a("s_add_u32 s6, s6, s3")
        a("s_add_u32 s6, s6, s%d" % sPO)
        a("s_add_u32 s6, s6, 0x%x" % YP)
        a("s_waitcnt lgkmcnt(0)")
        self.gather([(20, 4, A0, 5, 0), (24, 4, A0, 5, 128), (28, 4, A0, 5, 256), (32, 4, A1, 5, 384)], T)
        self.stamp(16)
        for ks in range(7):
            acc = v(16, 4) if ks % 2 == 0 else v(36, 4)
            a("v_mfma_f32_16x16x32_bf16 %s, %s, %s, %s" % (acc, v(W + 4 * ks, 4), v(20 + 4 * (ks // 2), 4), "0" if ks < 2 else acc))
        for i in range(4):
            self.dpp("v_add_f32", 16 + i, 36 + i, 16 + i, "row_ror:8")
        a("v_cvt_pk_bf16_f32 v16, v16, v17")
        a("v_cvt_pk_bf16_f32 v17, v18, v19")
        a("v_min_u32 v16, -2, v16")
        a("v_min_u32 v17, -2, v17")
        a("s_mov_b32 s8, 0x00ff00ff")
        a("s_mov_b32 s9, 0x00ff00ff")
        a("s_mov_b64 exec, s[8:9]")
        a("buffer_store_dwordx2 v[16:17], %s, %s, s6 offen sc1" % (v(SA), s(sWS, 4)))
        a("s_mov_b64 exec, -1")
        a.label(L + "_e")
        self.stamp(17)

    def r_stage(self):
        a = self.a
        a("s_and_b32 s7, s%d, 7" % sr)
        a("s_cmp_lg_u32 s7, s%d" % sx)
        a("s_cbranch_scc1 L_fin")
        a("s_cmp_lg_u32 s7, s%d" % sw)
        a("s_cbranch_scc1 L_fin")
        a("s_cmp_eq_u32 s7, 7")
        a("s_cbranch_scc1 L_fin")
        self.x_gather_reduce(YP, self.cfg["d_r"])
        a("s_lshr_b32 s6, s%d, 3" % sr)
        a("s_mul_i32 s6, s6, 1792")
        a("s_mov_b32 exec_hi, 0")
        a("buffer_store_dwordx2 v[28:29], v24, %s, s6 offen" % s(sOut, 4))
        a("s_mov_b64 exec, -1")
        a.label("L_fin")
        self.stamp(18)

    def build(self):
        a = self.a
        self.prologue()
        self.stamp(3)
        self.q_stage(True)
        self.stamp(4)
        self.start_barrier()
        self.attn1()
        a.label("L_loop")
        self.attn_tail()
        self.o_stage()
        a("s_cmp_lg_u32 s%d, 0" % sPass)
        a("s_cbranch_scc1 L_nogu")
        self.g_weights()
        self.g_stage()
        self.d_stage()
        a("s_cmp_lg_u32 s%d, 0" % sPass)
        a("s_cbranch_scc1 L_last")
        a("s_mov_b32 s%d, 1" % sPass)
        a("s_mov_b32 s%d, 0x%x" % (sPO, PPITCH))
        a("s_mov_b32 s%d, 0x%x" % (sQoff, QB0 - 0x10000))
        self.q_stage(False)
        self.stamp(21)
        a("s_mov_b32 s%d, 24" % sStamp)
        self.attn2()
        a("s_branch L_loop")
        a.label("L_last")
        self.r_stage()
        if self.stamps:
            a("s_lshl_b32 s3, s2, 3")
            a("s_add_u32 s3, s3, s%d" % sw)
            a("s_lshl_b32 s3, s3, 8")
            a("s_add_u32 s3, s3, 0x%x" % STAMP_OFF)
            a("v_lshlrev_b32 v16, 2, v0")
            a("buffer_store_dword v%d, v16, %s, s3 offen" % (vSt, s(sWS, 4)))
        a.label("L_end")
        lines = hazard.fix(a.lines, verbose=True)
        return wrap("\n".join(lines) + "\n", 256, 512, L_END, 256, 136)


if __name__ == "__main__":
    import argparse, json
    ap = argparse.ArgumentParser()
    ap.add_argument("out")
    ap.add_argument("--stamps", action="store_true")
    ap.add_argument("--cfg", default="{}")
    args = ap.parse_args()
    g = Gen(args.stamps, json.loads(args.cfg))
    open(args.out, "w").write(g.build())
    print("LDS", L_END)
    build(args.out)
```

```python
import sys, struct
from asmlib import *
import hazard

def f2u(x):
    return struct.unpack("<I", struct.pack("<f", x))[0]

PPITCH = 0x78000
OB, XP, YP, HB, ST = 0x0, 0x40000, 0x50000, 0x60000, 0x68000
QB0 = 0x100000
QB1 = 0xF0000
EPOCH = 0x120000
STAMP_OFF = 0x10000000
L_RED = 0
L_QL = L_RED + 16384
L_XL0 = L_QL + 8704
L_XL1 = L_XL0 + 1792
L_SL0 = L_XL1 + 1792
L_SL1 = L_SL0 + 128
L_STA = L_SL1 + 128
L_RED2 = L_STA + 128
L_WD = L_RED2 + 4096
L_WO = L_WD + 7168
L_WX = L_WO + 32768
L_END = L_WX + 57344
sK, sV, sWS, sWq, sWo, sWg, sWu, sWd, sX, sOut, sDbg = 12, 16, 20, 24, 28, 32, 36, 40, 44, 48, 52
sKV0, sTag, sPass, sStamp = 72, 73, 74, 75
sDbgP = 76
sMask = 80
sx, sr, sw, sPO, sFast, sBud = 96, 97, 98, 99, 100, 101
vL, vG, vN, vSt = 0, 1, 2, 3
vXres, vCs, vSel = 4, 8, 12
VF0, VF1, VS = 40, 72, 104
aK, aW = 0, 64

def rng(p, a, n):
    return "%s[%d:%d]" % (p, a, a + n - 1) if n > 1 else "%s%d" % (p, a)
def v(a, n=1): return rng("v", a, n)
def ac(a, n=1): return rng("a", a, n)
def s(a, n=1): return rng("s", a, n)


class Gen:
    def __init__(self, stamps=False, cfg=None):
        self.a = Asm()
        self.stamps = stamps
        self.cfg = dict(kwait=14, d_x=0, d_y=0, d_r=0, fast=True)
        self.cfg.update(dict(win=8, k0=4))
        if cfg: self.cfg.update(cfg)
        self.win = None
        self.nv = 0

    def vm(self, text):
        if self.win is not None:
            self.a("s_waitcnt vmcnt(%d)" % (self.win - 1))
        self.a(text)
        self.nv += 1
        return self.nv

    def wait_op(self, tag):
        self.a("s_waitcnt vmcnt(%d)" % (self.nv - tag))

    def stamp(self, i):
        if not self.stamps: return
        a = self.a
        a("s_memrealtime s[78:79]")
        a("s_add_u32 s3, s%d, %d" % (sStamp, i))
        a("s_waitcnt lgkmcnt(0)")
        a("s_mov_b32 m0, s3")
        a("s_nop 0")
        a("v_writelane_b32 v%d, s78, m0" % vSt)

    def bf16r(self, d, src):
        a = self.a
        a("v_cvt_pk_bf16_f32 %s, %s, %s" % (v(d), v(src), v(src)))
        a("v_lshlrev_b32 %s, 16, %s" % (v(d), v(d)))

    def unpack(self, d0, src):
        a = self.a
        a("v_lshlrev_b32 %s, 16, %s" % (v(d0), v(src)))
        a("v_and_b32 %s, 0xffff0000, %s" % (v(d0 + 1), v(src)))

    def rowred(self, op, r, t, steps=(16, 32)):
        a = self.a
        for st in steps:
            a("v_mov_b32 %s, %s" % (v(t), v(r)))
            a("v_permlane%d_swap_b32 %s, %s" % (st, v(r), v(t)))
            a("%s %s, %s, %s" % (op, v(r), v(r), v(t)))

    def dpp(self, op, d, s0, s1, ctrl):
        self.a("%s_dpp %s, %s, %s %s row_mask:0xf bank_mask:0xf" % (op, v(d), v(s0), v(s1), ctrl))

    def gather(self, loads, tmp, after=0, issue=True, between=None, execmask=None):
        a = self.a
        def ld():
            for dst, n, va, so, imm in loads:
                op = {1: "buffer_load_dword", 2: "buffer_load_dwordx2", 4: "buffer_load_dwordx4"}[n]
                a("%s %s, %s, %s, %s offen offset:%d sc1" % (op, v(dst, n), v(va), s(sWS, 4), s(so), imm))
        if execmask: a("s_mov_b64 exec, %s" % execmask)
        if issue: ld()
        if execmask: a("s_mov_b64 exec, -1")
        if between: between()
        L = a.newlabel("Lg")
        a("s_waitcnt vmcnt(%d)" % after)
        a.label(L)
        regs = [d + i for d, n, _, _, _ in loads for i in range(n)]
        if execmask: a("s_mov_b64 exec, %s" % execmask)
        if len(regs) >= 3:
            a("v_max3_u32 %s, %s, %s, %s" % (v(tmp), v(regs[0]), v(regs[1]), v(regs[2]))); rest = regs[3:]
        else:
            a("v_max_u32 %s, %s, %s" % (v(tmp), v(regs[0]), v(regs[1]))); rest = regs[2:]
        while rest:
            if len(rest) >= 2:
                a("v_max3_u32 %s, %s, %s, %s" % (v(tmp), v(tmp), v(rest[0]), v(rest[1]))); rest = rest[2:]
            else:
                a("v_max_u32 %s, %s, %s" % (v(tmp), v(tmp), v(rest[0]))); rest = []
        a("v_cmp_eq_u32 vcc, -1, %s" % v(tmp))
        a("s_cbranch_vccz %s_ok" % L)
        a("s_sub_u32 s%d, s%d, 1" % (sBud, sBud))
        a("s_cbranch_scc1 %s_to" % L)
        a("s_mov_b64 exec, vcc")
        ld()
        a("s_mov_b64 exec, -1")
        a("s_waitcnt vmcnt(0)")
        a("s_branch %s" % L)
        a.label(L + "_to")
        a("s_mov_b32 s%d, 0" % sBud)
        a.label(L + "_ok")
        if execmask: a("s_mov_b64 exec, -1")

    def intra_store(self, fn):
        a = self.a
        if not self.cfg["fast"]:
            fn(" sc1"); return
        L = a.newlabel("Ls")
        a("s_cmp_eq_u32 s%d, 0" % sFast)
        a("s_cbranch_scc1 %s_slow" % L)
        fn("")
        a("s_branch %s_done" % L)
        a.label(L + "_slow")
        fn(" sc1")
        a.label(L + "_done")

    def dma(self, srd, vaddr, soff_base, soff_step, lds_base, n, first=0):
        a = self.a
        a("s_mul_i32 s3, s%d, %d" % (sw, n * soff_step))
        a("s_add_u32 s3, s3, s%d" % soff_base)
        a("s_mul_i32 s4, s%d, %d" % (sw, n * 1024))
        a("s_add_u32 s4, s4, %d" % lds_base)
        for i in range(n):
            a("s_mov_b32 m0, s4")
            if i + 1 < n:
                a("s_add_u32 s4, s4, 1024")
            else:
                a("s_nop 0")
            self.vm("buffer_load_dwordx4 %s, %s, s3 offen nt lds" % (v(vaddr), s(srd, 4)))
            if i + 1 < n:
                a("s_add_u32 s3, s3, %d" % soff_step)

    def prologue(self):
        a = self.a
        a("s_cmp_ge_u32 s2, 256")
        a("s_cbranch_scc1 L_end")
        a("s_load_dwordx16 s[56:71], s[0:1], 0")
        a("s_load_dwordx8 s[72:79], s[0:1], 64")
        a("v_lshrrev_b32 v1, 6, v0")
        a("v_and_b32 v0, 63, v0")
        a("v_readfirstlane_b32 s%d, v1" % sw)
        a("v_lshlrev_b32 v16, 4, v0")
        a("v_lshrrev_b32 v%d, 4, v0" % vG)
        a("v_and_b32 v%d, 15, v0" % vN)
        a("v_mov_b32 v%d, 0" % vSt)
        a("s_and_b32 s%d, s2, 7" % sx)
        a("s_lshr_b32 s%d, s2, 3" % sr)
        a("v_lshlrev_b32 v38, 9, v%d" % vN)
        a("v_lshl_add_u32 v38, v%d, 4, v38" % vG)
        a("v_lshlrev_b32 v37, 4, v%d" % vN)
        a("v_lshl_add_u32 v37, v%d, 11, v37" % vG)
        a("s_and_b32 s6, s%d, 7" % sr)
        a("s_lshl_b32 s6, s6, 7")
        a("s_lshl_b32 s7, s%d, 10" % sx)
        a("s_add_u32 s6, s6, s7")
        a("v_lshrrev_b32 v19, 3, v0")
        a("v_lshlrev_b32 v19, 13, v19")
        a("v_and_b32 v20, 7, v0")
        a("v_lshl_add_u32 v19, v20, 4, v19")
        for i in range(4):
            a("v_mov_b32 v%d, -1" % (24 + i))
        a("s_waitcnt lgkmcnt(0)")
        srds = [(sX, 56, 7168), (sK, 58, 1 << 27), (sV, 60, 1 << 27), (sWq, 62, 448 * 8192), (sWo, 64, 4096 * 896),
                (sWg, 68, 448 * 3584), (sWu, 70, 448 * 3584), (sWd, 72, 1792 * 896), (sOut, 74, 7168), (sDbg, 76, 256),
                (sWS, 78, 1 << 29)]
        def mk(i):
            d, src, n = srds[i]
            a("s_mov_b32 s%d, s%d" % (d, src))
            a("s_mov_b32 s%d, s%d" % (d + 1, src + 1))
            a("s_mov_b32 s%d, 0x%x" % (d + 2, n))
            a("s_mov_b32 s%d, 0x00020000" % (d + 3))
        a("s_mov_b32 s10, 0x%x" % EPOCH)
        a("s_load_dword s11, s[78:79], s10")
        mk(10)
        a("s_cmp_lg_u32 s%d, 7" % sw)
        a("s_cbranch_scc1 L_noclr")
        a("s_lshl_b32 s3, s2, 12")
        for i in range(4):
            a("buffer_store_dwordx4 v[24:27], v16, %s, s3 offen offset:%d sc1" % (s(sWS, 4), 1024 * i))
        a.label("L_noclr")
        mk(3)
        self.dma(sWq, 19, 6, 65536, L_WX, 7)
        for i in (0, 7, 8, 9): mk(i)
        a("s_mov_b32 s%d, 0" % sStamp)
        a("s_waitcnt lgkmcnt(0)")
        a("s_add_u32 s%d, s11, 1" % sTag)
        self.stamp(0)
        a("s_mov_b32 s%d, 0" % sPass)
        a("s_mov_b32 s%d, 0" % sPO)
        a("s_mov_b32 s%d, 0" % sFast)
        a("s_mov_b32 s%d, 30000" % sBud)
        self.x_col_addr(24, 25)
        a("s_lshr_b32 s6, s%d, 3" % sr)
        a("s_mul_i32 s6, s6, 1792")
        a("buffer_load_dwordx2 v[28:29], v24, %s, s6 offen" % s(sX, 4))
        mk(1)
        a("s_lshr_b32 s3, s%d, 2" % sr)
        a("s_lshl_b32 s3, s3, 3")
        a("s_add_u32 s3, s3, s%d" % sx)
        a("s_lshl_b32 s3, s3, 21")
        a("s_and_b32 s4, s%d, 3" % sr)
        a("s_lshl_b32 s4, s4, 17")
        a("s_add_u32 s3, s3, s4")
        a("s_lshl_b32 s4, s%d, 14" % sw)
        a("s_add_u32 s3, s3, s4")
        a("s_add_u32 s%d, s3, %d" % (sKV0, 3072 * 512))
        a("s_barrier")
        self.k_loads(0, 38, range(self.cfg["k0"]))
        a("s_cmp_lg_u32 s%d, 7" % sw)
        a("s_cbranch_scc1 L_noarr")
        a("s_getreg_b32 s3, hwreg(HW_REG_XCC_ID, 0, 4)")
        a("s_and_b32 s3, s3, 7")
        a("s_or_b32 s3, s3, 0x80")
        a("v_mov_b32 v20, s3")
        a("s_lshl_b32 s4, s%d, 5" % sx)
        a("s_add_u32 s4, s4, s%d" % sr)
        a("v_mov_b32 v21, s4")
        a("s_waitcnt vmcnt(%d)" % (8 + self.cfg["k0"]))
        a("s_mov_b64 exec, 1")
        a("buffer_store_byte v20, v21, %s, 0 offen sc1" % s(sDbg, 4))
        a("s_mov_b64 exec, -1")
        a.label("L_noarr")
        for i in (2, 4, 5, 6): mk(i)
        for u in range(8):
            m = (3 << (2 * u)) * 0x00010001
            a("s_mov_b32 s%d, 0x%08x" % (sMask + 2 * u, m))
            a("s_mov_b32 s%d, 0x%08x" % (sMask + 2 * u + 1, m))
        a("v_and_b32 v20, 1, v%d" % vN)
        a("v_lshlrev_b32 v20, 4, v20")
        a("v_mov_b32 v21, 0x3f80")
        a("v_lshlrev_b32 v21, v20, v21")
        a("v_bfe_u32 v20, v%d, 1, 2" % vN)
        for c in range(4):
            a("v_cmp_eq_u32 vcc, %d, v20" % c)
            a("v_cndmask_b32 v%d, 0, v21, vcc" % (vSel + c))
        a("v_mov_b32 v20, 0")
        a("v_and_b32 v21, 3, v0")
        a("v_lshlrev_b32 v21, 2, v21")
        a("ds_write_b32 v21, v20 offset:%d" % (L_SL0 + 112))
        a("ds_write_b32 v21, v20 offset:%d" % (L_SL1 + 112))
        self.stamp(1)
        a("s_waitcnt vmcnt(%d)" % self.cfg["k0"])
        a("s_cmp_eq_u32 s%d, 7" % sw)
        a("s_cbranch_scc1 L_nopub")
        self.x_publish(L_XL0, L_SL0)
        a.label("L_nopub")
        a("s_waitcnt lgkmcnt(0)")
        a("s_barrier")
        self.stamp(2)
        a("s_cmp_ge_u32 s%d, 4" % sw)
        a("s_cbranch_scc1 L_nowq")
        a("v_lshrrev_b32 v20, 2, v%d" % vN)
        a("v_lshl_add_u32 v20, v%d, 3, v20" % vG)
        a("v_lshlrev_b32 v20, 7, v20")
        a("v_and_b32 v21, 3, v%d" % vN)
        a("v_lshl_add_u32 v20, v21, 3, v20")
        a("s_lshl_b32 s3, s%d, 5" % sw)
        a("v_add_u32 v20, s3, v20")
        self.w_operands(20, L_WX, 128)
        self.stamp(3)
        self.x_main_addr()
        self.q_store_addr(22, 5, True)
        self.q_main(True)
        a.label("L_nowq")

    def w_operands(self, va, base, pitch):
        a = self.a
        a("v_add_u32 %s, %d, %s" % (v(va), base, v(va)))
        for ks in range(14):
            for hh in range(2):
                a("ds_read_b64_tr_b16 %s, %s offset:%d" % (ac(aW + ks * 4 + hh * 2, 2), v(va), (32 * ks + 4 * hh) * pitch))
        for c in range(4):
            a("v_mov_b32 v%d, 0x3f803f80" % (32 + c))
        a("s_waitcnt lgkmcnt(0)")
        for ks in range(14):
            a("v_mfma_f32_16x16x32_bf16 %s, %s, v[32:35], %s" % (v(vCs, 4), ac(aW + ks * 4, 4), "0" if ks == 0 else v(vCs, 4)))

    def k_loads(self, t, va, kss=range(8)):
        a = self.a
        a("s_add_u32 s7, s%d, 8192" % sKV0)
        for ks in kss:
            self.vm("buffer_load_dwordx4 %s, %s, %s, s%d offen offset:%d nt" % (
                ac(aK + (t * 8 + ks) * 4, 4), v(va), s(sK, 4), sKV0 if t == 0 else 7, ks * 64))

    def v_loads(self, hf, dst, va, js=range(8)):
        a = self.a
        a("s_add_u32 s7, s%d, 8192" % sKV0)
        tags = {}
        for j in js:
            tags[j] = self.vm("buffer_load_dwordx4 %s, %s, %s, s%d offen offset:%d nt" % (
                v(dst + 4 * j, 4), v(va), s(sV, 4), sKV0 if j < 4 else 7, (j & 3) * 512 + hf * 256))
        return tags

    def q_store_addr(self, vd, sd, first):
        a = self.a
        k = 1 if first else 0
        a("v_and_b32 %s, 1, v%d" % (v(vd), vN))
        a("v_lshlrev_b32 %s, %d, %s" % (v(vd), 10 + k, v(vd)))
        a("v_lshl_add_u32 %s, v%d, %d, %s" % (v(vd), vG, 3 + k, v(vd)))
        a("s_lshl_b32 s%d, s%d, %d" % (sd, sx, 13 + k))
        a("s_add_u32 s%d, s%d, 0x%x" % (sd, sd, QB0 if first else QB1))
        a("s_lshr_b32 s3, s%d, 3" % sr)
        a("s_lshl_b32 s3, s3, %d" % (11 + k))
        a("s_add_u32 s%d, s%d, s3" % (sd, sd))
        a("s_and_b32 s3, s%d, 7" % sr)
        a("s_lshl_b32 s3, s3, %d" % (7 + k))
        a("s_add_u32 s%d, s%d, s3" % (sd, sd))
        a("s_and_b32 s3, s%d, 3" % sw)
        a("s_lshl_b32 s3, s3, %d" % (5 + k))
        a("s_add_u32 s%d, s%d, s3" % (sd, sd))

    def x_col_addr(self, vd, vt):
        a = self.a
        a("v_lshrrev_b32 %s, 2, v%d" % (v(vd), vN))
        a("v_lshlrev_b32 %s, 5, %s" % (v(vd), v(vd)))
        a("v_and_b32 %s, 1, v%d" % (v(vt), vN))
        a("v_lshl_add_u32 %s, %s, 4, %s" % (v(vd), v(vt), v(vd)))
        a("v_and_b32 %s, 1, v%d" % (v(vt), vG))
        a("v_lshl_add_u32 %s, %s, 3, %s" % (v(vd), v(vt), v(vd)))
        a("v_bfe_u32 %s, v%d, 1, 1" % (v(vt), vN))
        a("v_mul_u32_u24 %s, 896, %s" % (v(vt), v(vt)))
        a("v_add_u32 %s, %s, %s" % (v(vd), v(vd), v(vt)))
        a("s_lshl_b32 s3, s%d, 7" % sw)
        a("v_add_u32 %s, s3, %s" % (v(vd), v(vd)))

    def x_gather_reduce(self, region, delay):
        a = self.a
        self.x_col_addr(24, 25)
        a("v_mul_u32_u24 v26, 3584, v%d" % vG)
        a("v_lshrrev_b32 v25, 2, v%d" % vN)
        a("v_lshl_add_u32 v26, v25, 7, v26")
        a("v_and_b32 v25, 3, v%d" % vN)
        a("v_lshl_add_u32 v26, v25, 4, v26")
        a("s_lshr_b32 s3, s%d, 4" % sr)
        a("s_mul_i32 s5, s3, 28672")
        a("s_add_u32 s5, s5, s%d" % sPO)
        a("s_bfe_u32 s3, s%d, 0x10003" % sr)
        a("s_lshl_b32 s3, s3, 6")
        a("s_add_u32 s5, s5, s3")
        a("s_lshl_b32 s3, s%d, 9" % sw)
        a("s_add_u32 s5, s5, s3")
        a("s_add_u32 s5, s5, 0x%x" % (region & 0xffffffff))
        a("s_add_u32 s6, s5, %d" % (4 * 3584))
        if delay:
            a("s_sleep %d" % delay)
        self.gather([(VS, 4, 26, 5, 0), (VS + 4, 4, 26, 6, 0)], 25)
        a("v_mfma_f32_16x16x32_bf16 v[16:19], %s, %s, 0" % (v(vSel, 4), v(VS, 4)))
        a("v_mfma_f32_16x16x32_bf16 v[16:19], %s, %s, v[16:19]" % (v(vSel, 4), v(VS + 4, 4)))
        a("v_cvt_pk_bf16_f32 v28, v16, v17")
        a("v_cvt_pk_bf16_f32 v29, v18, v19")
        self.unpack(16, 28)
        self.unpack(18, 29)
        for i in range(4):
            a("v_add_f32 v%d, v%d, v%d" % (16 + i, 16 + i, vXres + i))
        a("v_cvt_pk_bf16_f32 v28, v16, v17")
        a("v_cvt_pk_bf16_f32 v29, v18, v19")

    def x_publish(self, XL, SL):
        a = self.a
        a("ds_write_b64 v24, v[28:29] offset:%d" % XL)
        self.unpack(vXres, 28)
        self.unpack(vXres + 2, 29)
        a("v_add_f32 v16, v%d, v%d" % (vXres, vXres + 1))
        a("v_mul_f32 v17, v%d, v%d" % (vXres, vXres))
        a("v_add_f32 v18, v%d, v%d" % (vXres + 2, vXres + 3))
        a("v_mul_f32 v19, v%d, v%d" % (vXres + 2, vXres + 2))
        a("v_fmac_f32 v17, v%d, v%d" % (vXres + 1, vXres + 1))
        a("v_fmac_f32 v19, v%d, v%d" % (vXres + 3, vXres + 3))
        a("v_add_f32 v16, v16, v18")
        a("v_add_f32 v17, v17, v19")
        a("v_and_b32 v20, 2, v%d" % vN)
        a("v_lshlrev_b32 v20, 2, v20")
        a("s_lshl_b32 s3, s%d, 4" % sw)
        a("v_add_u32 v20, s3, v20")
        for ctrl in ("quad_perm:[1,0,3,2]", "row_ror:4", "row_ror:8"):
            self.dpp("v_add_f32", 16, 16, 16, ctrl)
            self.dpp("v_add_f32", 17, 17, 17, ctrl)
        a("v_mov_b32 v18, v16")
        a("v_mov_b32 v19, v17")
        a("v_permlane16_swap_b32 v16, v18")
        a("v_permlane16_swap_b32 v17, v19")
        a("v_add_f32 v16, v16, v18")
        a("v_add_f32 v17, v17, v19")
        a("s_mov_b64 exec, 5")
        a("ds_write_b64 v20, v[16:17] offset:%d" % SL)
        a("s_mov_b64 exec, -1")

    def x_main(self, XL, SL):
        a = self.a
        a("ds_read_b64 v[20:21], v31 offset:%d" % SL)
        for ks in range(8):
            a("ds_read_b128 %s, v30 offset:%d" % (v(VS + 4 * ks, 4), XL + ks * 64))
        stat = []
        for ctrl in ("quad_perm:[2,3,0,1]", "row_ror:4", "row_ror:8"):
            stat.append("v_add_f32_dpp v20, v20, v20 %s row_mask:0xf bank_mask:0xf" % ctrl)
            stat.append("v_add_f32_dpp v21, v21, v21 %s row_mask:0xf bank_mask:0xf" % ctrl)
        inv = "0x%08x" % f2u(1.0 / 448.0)
        stat += ["v_mul_f32 v20, %s, v20" % inv,
                 "v_mul_f32 v21, %s, v21" % inv,
                 "v_fma_f32 v21, -v20, v20, v21",
                 "v_cvt_pk_bf16_f32 v20, v20, v20",
                 "v_max_f32 v21, 0, v21",
                 "v_lshlrev_b32 v20, 16, v20",
                 "v_cvt_pk_bf16_f32 v21, v21, v21",
                 "v_lshlrev_b32 v21, 16, v21",
                 "v_add_f32 v21, 0x%08x, v21" % f2u(1e-5),
                 "v_cvt_pk_bf16_f32 v21, v21, v21",
                 "v_lshlrev_b32 v21, 16, v21",
                 "v_sqrt_f32 v21, v21",
                 "v_cvt_pk_bf16_f32 v21, v21, v21",
                 "v_lshlrev_b32 v21, 16, v21",
                 "v_rcp_f32 v21, v21"]
        outstanding = 8
        for ks in range(14):
            nxt = min(ks + 8, 14) - ks - 1
            a("s_waitcnt lgkmcnt(%d)" % nxt)
            a("v_mfma_f32_16x16x32_bf16 v[16:19], %s, %s, %s" % (ac(aW + 4 * ks, 4), v(VS + 4 * (ks % 8), 4), "0" if ks == 0 else "v[16:19]"))
            if ks + 8 < 14:
                a("ds_read_b128 %s, v30 offset:%d" % (v(VS + 4 * (ks % 8), 4), XL + (ks + 8) * 64))
            for _ in range(2):
                if stat: a(stat.pop(0))
        assert not stat
        for i in range(4):
            a("v_fma_f32 v%d, -v20, v%d, v%d" % (16 + i, vCs + i, 16 + i))
        for i in range(4):
            a("v_mul_f32 v%d, v21, v%d" % (16 + i, 16 + i))

    def x_main_addr(self):
        a = self.a
        a("v_and_b32 v30, 1, v%d" % vN)
        a("v_mul_u32_u24 v30, 896, v30")
        a("v_lshl_add_u32 v30, v%d, 4, v30" % vG)
        a("v_lshlrev_b32 v31, 3, v%d" % vN)

    def q_main(self, first):
        a = self.a
        self.x_main(L_XL0, L_SL0)
        if first:
            a("v_cvt_pk_bf16_f32 v16, v16, v17")
            a("v_cvt_pk_bf16_f32 v18, v18, v19")
            a("v_mov_b32 v17, s%d" % sTag)
            a("v_mov_b32 v19, s%d" % sTag)
            a("s_mov_b64 exec, %s" % s(sMask, 2))
            a("buffer_store_dwordx4 v[16:19], v22, %s, s5 offen sc1" % s(sWS, 4))
            a("s_mov_b64 exec, -1")
            return
        a("v_cvt_pk_bf16_f32 v16, v16, v17")
        a("v_cvt_pk_bf16_f32 v17, v18, v19")
        a("v_min_u32 v16, -2, v16")
        a("v_min_u32 v17, -2, v17")
        a("s_mov_b64 exec, %s" % s(sMask, 2))
        self.intra_store(lambda p: a("buffer_store_dwordx2 v[16:17], v22, %s, s5 offen%s" % (s(sWS, 4), p)))
        a("s_mov_b64 exec, -1")

    def q_stage(self):
        a = self.a
        L = a.newlabel("Lq")
        a("s_cmp_eq_u32 s%d, 7" % sw)
        a("s_cbranch_scc1 %s_b" % L)
        self.x_gather_reduce(YP - PPITCH, self.cfg["d_y"])
        self.stamp(20)
        self.x_publish(L_XL0, L_SL0)
        a.label(L + "_b")
        self.x_main_addr()
        self.q_store_addr(22, 5, False)
        a("s_waitcnt lgkmcnt(0)")
        a("s_barrier")
        a("s_cmp_ge_u32 s%d, 4" % sw)
        a("s_cbranch_scc1 %s_e" % L)
        self.q_main(False)
        a.label(L + "_e")

    def chk_issue(self):
        self.a("buffer_load_dword v34, v35, %s, 0 offen sc1" % s(sDbg, 4))

    def chk_wait(self, after):
        a = self.a
        a("s_waitcnt vmcnt(%d)" % after)
        a.label("L_chk")
        a("s_mov_b32 s3, 0x80808080")
        a("v_and_b32 v20, s3, v34")
        a("v_cmp_ne_u32 vcc, s3, v20")
        a("s_cbranch_vccz L_chk_ok")
        a("s_sub_u32 s%d, s%d, 1" % (sBud, sBud))
        a("s_cbranch_scc1 L_chk_to")
        a("s_sleep 16")
        self.chk_issue()
        a("s_waitcnt vmcnt(0)")
        a("s_branch L_chk")
        a.label("L_chk_to")
        a("s_mov_b32 s%d, 0" % sBud)
        a.label("L_chk_ok")
        a("s_getreg_b32 s3, hwreg(HW_REG_XCC_ID, 0, 4)")
        a("s_and_b32 s3, s3, 7")
        a("s_or_b32 s3, s3, 0x80")
        a("s_mul_i32 s3, s3, 0x01010101")
        a("v_cmp_eq_u32 vcc, s3, v34")
        a("s_lshl_b32 s4, s%d, 3" % sx)
        a("s_lshr_b64 s[10:11], vcc, s4")
        a("s_and_b32 s3, s10, 0xff")
        a("s_cmp_eq_u32 s3, 0xff")
        a("s_cselect_b32 s%d, 1, 0" % sFast)

    def q_addr(self, first):
        a = self.a
        k = 1 if first else 0
        a("v_lshlrev_b32 v34, 4, v0")
        if first:
            a("v_lshlrev_b32 v39, 5, v0")
        a("s_lshl_b32 s5, s%d, %d" % (sx, 13 + k))
        a("s_add_u32 s5, s5, 0x%x" % (QB0 if first else QB1))
        a("s_lshr_b32 s3, s%d, 2" % sr)
        a("s_lshl_b32 s3, s3, %d" % (10 + k))
        a("s_add_u32 s5, s5, s3")
        a("s_mul_i32 s3, s%d, 1088" % sw)
        a("v_lshrrev_b32 v35, 5, v0")
        a("v_lshl_add_u32 v35, v35, 6, v34")
        a("v_add_u32 v35, s3, v35")
        a("v_and_b32 v36, 1, v%d" % vN)
        a("v_mul_u32_u24 v36, 576, v36")
        a("v_lshl_add_u32 v36, v%d, 4, v36" % vG)
        a("v_add_u32 v36, s3, v36")

    def qk_softmax(self, QB):
        a = self.a
        a("ds_write_b128 v35, v[16:19] offset:%d" % L_QL)
        a("s_waitcnt lgkmcnt(0)")
        for ks in range(8):
            a("ds_read_b128 %s, v36 offset:%d" % (v(QB + 4 * ks, 4), L_QL + ks * 64))
        for ks in range(8):
            a("s_waitcnt lgkmcnt(%d)" % (7 - ks))
            for t in range(2):
                a("v_mfma_f32_16x16x32_bf16 %s, %s, %s, %s" % (v(20 + 4 * t, 4), ac(aK + (t * 8 + ks) * 4, 4), v(QB + 4 * ks, 4),
                                                               "0" if ks == 0 else v(20 + 4 * t, 4)))
        a("s_mov_b32 s4, 0x%08x" % f2u(1.4426950408889634 / 16.0))
        for i in range(4):
            a("v_cvt_pk_bf16_f32 v%d, v%d, v%d" % (28 + i, 20 + 2 * i, 21 + 2 * i))
        for i in range(4):
            self.unpack(20 + 2 * i, 28 + i)
        a("v_max3_f32 v32, v20, v21, v22")
        a("v_max3_f32 v33, v23, v24, v25")
        a("v_max3_f32 v32, v32, v26, v27")
        a("v_max_f32 v32, v32, v33")
        self.rowred("v_max_f32", 32, 33)
        a("v_mul_f32 v32, s4, v32")
        for i in range(8):
            a("v_fma_f32 v%d, v%d, s4, -v32" % (20 + i, 20 + i))
        for i in range(8):
            a("v_exp_f32 v%d, v%d" % (20 + i, 20 + i))
        for i in range(4):
            a("v_cvt_pk_bf16_f32 v%d, v%d, v%d" % (28 + i, 20 + 2 * i, 21 + 2 * i))
        a("v_add_f32 v33, v20, v21")
        a("v_add_f32 v22, v22, v23")
        a("v_add_f32 v24, v24, v25")
        a("v_add_f32 v26, v26, v27")
        a("v_add_f32 v33, v33, v22")
        a("v_add_f32 v24, v24, v26")
        a("v_add_f32 v33, v33, v24")
        self.rowred("v_add_f32", 33, 34)

    def transpose(self, src, dst, pairs=range(4)):
        a = self.a
        for c in pairs:
            for e in range(8):
                a("v_perm_b32 %s, %s, %s, s%d" % (v(dst + 4 * e + c), v(src + 4 * (2 * c + 1) + (e >> 1)), v(src + 4 * (2 * c) + (e >> 1)),
                                                 6 + (e & 1)))

    def pv(self, halves):
        a = self.a
        for u in range(8):
            pvr = 20 + 4 * (u & 1)
            for c in range(4):
                a("v_cndmask_b32 v%d, 0, v%d, %s" % (pvr + c, 28 + c, s(sMask + 2 * u, 2)))
            for hf in halves:
                acc = v(16, 4) if hf == 0 else v(36, 4)
                F = VF0 if hf == 0 else VF1
                a("v_mfma_f32_16x16x32_bf16 %s, %s, %s, %s" % (acc, v(F + 4 * u, 4), v(pvr, 4), "0" if u == 0 else acc))

    def weights_dma(self, which):
        a = self.a
        if which == "o":
            a("v_lshrrev_b32 v20, 2, v0")
            a("v_mul_u32_u24 v20, 896, v20")
            a("v_and_b32 v21, 3, v0")
            a("v_lshl_add_u32 v20, v21, 4, v20")
            a("s_mul_i32 s6, s%d, %d" % (sx, 512 * 896))
            a("s_and_b32 s5, s%d, 15" % sr)
            a("s_min_u32 s5, s5, 13")
            a("s_lshl_b32 s5, s5, 6")
            a("s_add_u32 s6, s6, s5")
            self.dma(sWo, 20, 6, 16 * 896, L_WO, 4)
            return 4
        if which == "gu":
            a("v_lshrrev_b32 v20, 2, v0")
            a("v_mul_u32_u24 v20, 3584, v20")
            a("v_and_b32 v21, 3, v0")
            a("v_lshl_add_u32 v20, v21, 4, v20")
            a("s_mul_i32 s6, s%d, 448" % sx)
            a("s_and_b32 s5, s%d, 7" % sr)
            a("s_min_u32 s5, s5, 6")
            a("s_lshl_b32 s5, s5, 6")
            a("s_add_u32 s6, s6, s5")
            L = a.newlabel("Lgu")
            a("s_cmp_ge_u32 s%d, 4" % sw)
            a("s_cbranch_scc1 %s_u" % L)
            self.dma(sWg, 20, 6, 16 * 3584, L_WX, 7)
            self.nv -= 7
            a("s_branch %s_d" % L)
            a.label(L + "_u")
            a("s_sub_u32 s6, s6, %d" % (448 * 3584))
            self.dma(sWu, 20, 6, 16 * 3584, L_WX, 7)
            a.label(L + "_d")
            return 7
        if which == "d":
            a("v_lshrrev_b32 v20, 1, v0")
            a("v_mul_u32_u24 v20, 896, v20")
            a("v_and_b32 v21, 1, v0")
            a("v_lshl_add_u32 v20, v21, 4, v20")
            a("s_mul_i32 s6, s%d, %d" % (sx, 224 * 896))
            a("s_min_u32 s5, s%d, 27" % sr)
            a("s_lshl_b32 s5, s5, 5")
            a("s_add_u32 s6, s6, s5")
            a("s_min_u32 s5, s%d, 6" % sw)
            a("s_mul_i32 s3, s5, %d" % (32 * 896))
            a("s_add_u32 s3, s3, s6")
            a("s_lshl_b32 s4, s5, 10")
            a("s_add_u32 s4, s4, %d" % L_WD)
            a("s_mov_b32 m0, s4")
            a("s_nop 0")
            self.vm("buffer_load_dwordx4 v20, %s, s3 offen nt lds" % s(sWd, 4))
            return 1

    def attn1(self):
        a = self.a
        self.win = self.cfg["win"]
        self.k_loads(0, 38, range(self.cfg["k0"], 8))
        self.k_loads(1, 38)
        t1 = self.v_loads(0, VF1, 37, range(4))
        self.q_addr(True)
        def qld():
            a("buffer_load_dwordx4 v[24:27], v39, %s, s5 offen sc1" % s(sWS, 4))
            a("buffer_load_dwordx4 v[28:31], v39, %s, s5 offen offset:16 sc1" % s(sWS, 4))
        qld()
        self.nv += 2
        tq = self.nv
        self.stamp(5)
        t2 = {}
        a("s_mov_b32 s10, s5")
        t1.update(self.v_loads(0, VF1, 37, range(4, 8)))
        self.weights_dma("o")
        a("s_mov_b32 s5, s10")
        self.wait_op(tq)
        a.label("L_q0")
        a("v_xor_b32 v16, s%d, v25" % sTag)
        a("v_xor_b32 v17, s%d, v27" % sTag)
        a("v_xor_b32 v18, s%d, v29" % sTag)
        a("v_xor_b32 v19, s%d, v31" % sTag)
        a("v_or3_b32 v16, v16, v17, v18")
        a("v_or_b32 v16, v16, v19")
        a("v_cmp_ne_u32 vcc, 0, v16")
        a("s_cbranch_vccz L_q0_ok")
        a("s_sub_u32 s%d, s%d, 1" % (sBud, sBud))
        a("s_cbranch_scc1 L_q0_to")
        a("s_mov_b64 exec, vcc")
        qld()
        a("s_mov_b64 exec, -1")
        a("s_waitcnt vmcnt(0)")
        a("s_branch L_q0")
        a.label("L_q0_to")
        a("s_mov_b32 s%d, 0" % sBud)
        a.label("L_q0_ok")
        for i in range(4):
            a("v_mov_b32 v%d, v%d" % (16 + i, 24 + 2 * i))
        self.stamp(6)
        t2.update(self.v_loads(1, VS, 37, range(3)))
        self.qk_softmax(VF0)
        a("v_lshlrev_b32 v35, 2, v0")
        self.chk_issue(); self.nv += 1
        tchk = self.nv
        t2.update(self.v_loads(1, VS, 37, range(3, 8)))
        self.wait_op(t1[7])
        a("s_mov_b32 s6, 0x05040100")
        a("s_mov_b32 s7, 0x07060302")
        self.transpose(VF1, VF0)
        self.pv([0])
        self.stamp(7)
        self.win = None
        self.weights_dma("gu")
        self.weights_dma("d")
        self.chk_wait(self.nv - tchk)
        a("s_mov_b32 s6, 0x05040100")
        a("s_mov_b32 s7, 0x07060302")
        for c in range(4):
            self.wait_op(t2[2 * c + 1])
            self.transpose(VS, VF1, [c])
        self.stamp(8)
        self.pv([1])

    def attn2(self):
        a = self.a
        self.q_addr(False)
        self.gather([(16, 4, 34, 5, 0)], 20)
        self.stamp(6)
        self.qk_softmax(VS)
        self.stamp(7)
        self.pv([0, 1])

    def attn_tail(self):
        a = self.a
        L = a.newlabel("Lat")
        a("v_lshlrev_b32 v20, 4, v0")
        a("s_lshl_b32 s3, s%d, 11" % sw)
        a("v_add_u32 v20, s3, v20")
        a("v_and_b32 v21, 1, v0")
        a("v_lshlrev_b32 v21, 6, v21")
        a("s_lshl_b32 s3, s%d, 2" % sw)
        a("v_add_u32 v21, s3, v21")
        a("s_mov_b64 exec, 3")
        a("ds_write_b32 v21, v32 offset:%d" % L_STA)
        a("ds_write_b32 v21, v33 offset:%d" % (L_STA + 32))
        a("s_mov_b64 exec, -1")
        a("ds_write_b128 v20, v[16:19] offset:%d" % L_RED)
        a("ds_write_b128 v20, v[36:39] offset:%d" % (L_RED + 1024))
        a("s_lshl_b32 s3, s%d, 6" % sw)
        a("v_add_u32 v25, s3, v0")
        a("v_lshlrev_b32 v22, 3, v25")
        a("v_bfe_u32 v26, v0, 1, 1")
        a("v_lshlrev_b32 v23, 6, v26")
        a("v_lshrrev_b32 v24, 2, v25")
        a("v_lshlrev_b32 v24, 3, v24")
        a("v_and_b32 v27, 1, v0")
        a("v_lshl_add_u32 v24, v27, 2, v24")
        a("v_lshl_add_u32 v24, v26, 9, v24")
        a("v_lshlrev_b32 v27, 3, v26")
        a("s_lshl_b32 s5, s%d, 5" % sx)
        a("s_add_u32 s5, s5, s%d" % sr)
        a("s_lshl_b32 s6, s5, 4")
        a("s_lshl_b32 s5, s5, 10")
        a("s_add_u32 s5, s5, s%d" % sPO)
        a("s_add_u32 s6, s6, s%d" % sPO)
        a("s_add_u32 s6, s6, 0x%x" % ST)
        a("s_waitcnt lgkmcnt(0)")
        a("s_barrier")
        self.stamp(9)
        a("s_cmp_ge_u32 s%d, 4" % sw)
        a("s_cbranch_scc1 %s_e" % L)
        M, Lr, D = VS, VS + 8, VS + 16
        a("ds_read_b128 %s, v23 offset:%d" % (v(M, 4), L_STA))
        a("ds_read_b128 %s, v23 offset:%d" % (v(M + 4, 4), L_STA + 16))
        a("ds_read_b128 %s, v23 offset:%d" % (v(Lr, 4), L_STA + 32))
        a("ds_read_b128 %s, v23 offset:%d" % (v(Lr + 4, 4), L_STA + 48))
        for w in range(8):
            a("ds_read_b64 %s, v22 offset:%d" % (v(D + 2 * w, 2), L_RED + 2048 * w))
        a("s_waitcnt lgkmcnt(10)")
        a("v_max3_f32 v16, %s, %s, %s" % (v(M), v(M + 1), v(M + 2)))
        a("v_max3_f32 v17, %s, %s, %s" % (v(M + 3), v(M + 4), v(M + 5)))
        a("v_max3_f32 v16, v16, %s, %s" % (v(M + 6), v(M + 7)))
        a("v_max_f32 v16, v16, v17")
        for w in range(8):
            a("v_sub_f32 %s, %s, v16" % (v(M + w), v(M + w)))
        for w in range(8):
            a("v_exp_f32 %s, %s" % (v(M + w), v(M + w)))
        a("s_waitcnt lgkmcnt(0)")
        a("v_mul_f32 v18, %s, %s" % (v(M), v(D)))
        a("v_mul_f32 v19, %s, %s" % (v(M), v(D + 1)))
        a("v_mul_f32 v17, %s, %s" % (v(M), v(Lr)))
        for w in range(1, 8):
            a("v_fmac_f32 v18, %s, %s" % (v(M + w), v(D + 2 * w)))
            a("v_fmac_f32 v19, %s, %s" % (v(M + w), v(D + 2 * w + 1)))
            a("v_fmac_f32 v17, %s, %s" % (v(M + w), v(Lr + w)))
        a("v_cvt_pk_bf16_f32 v18, v18, v19")
        a("v_min_u32 v18, -2, v18")
        a("v_min_u32 v16, -2, v16")
        a("v_min_u32 v17, -2, v17")
        a("s_cmp_eq_u32 s%d, 0" % sw)
        a("s_cselect_b64 s[8:9], 5, 0")
        def st(p):
            a("buffer_store_dword v18, v24, %s, s5 offen%s" % (s(sWS, 4), p))
            LL = a.newlabel("Lst")
            a("s_cmp_lg_u32 s%d, 0" % sw)
            a("s_cbranch_scc1 %s" % LL)
            a("s_mov_b64 exec, 5")
            a("buffer_store_dwordx2 v[16:17], v27, %s, s6 offen%s" % (s(sWS, 4), p))
            a("s_mov_b64 exec, -1")
            a.label(LL)
        self.intra_store(st)
        a.label(L + "_e")
        self.stamp(10)

    def o_stage(self):
        a = self.a
        L = a.newlabel("Lo")
        a("s_and_b32 s7, s%d, 15" % sr)
        a("s_cmp_ge_u32 s7, 14")
        a("s_cbranch_scc1 %s_skip" % L)
        W, Dt = VS, VS + 16
        a("v_lshrrev_b32 v20, 2, v%d" % vN)
        a("v_lshlrev_b32 v20, 9, v20")
        a("v_lshl_add_u32 v20, v%d, 7, v20" % vG)
        a("v_and_b32 v21, 3, v%d" % vN)
        a("v_lshl_add_u32 v20, v21, 3, v20")
        a("s_lshl_b32 s3, s%d, 12" % sw)
        a("v_add_u32 v20, s3, v20")
        for kk in range(2):
            for t in range(2):
                for hh in range(2):
                    a("ds_read_b64_tr_b16 %s, v20 offset:%d" % (v(W + (kk * 2 + t) * 4 + hh * 2, 2), L_WO + (32 * kk + hh) * 64 + t * 32))
        a("v_lshlrev_b32 v22, 10, v%d" % vN)
        a("v_lshl_add_u32 v22, v%d, 4, v22" % vG)
        a("v_lshlrev_b32 v23, 4, v%d" % vN)
        a("s_lshl_b32 s3, s%d, 5" % sx)
        a("s_and_b32 s4, s%d, 16" % sr)
        a("s_add_u32 s3, s3, s4")
        a("s_lshl_b32 s5, s3, 10")
        a("s_lshl_b32 s4, s%d, 7" % sw)
        a("s_add_u32 s5, s5, s4")
        a("s_add_u32 s5, s5, s%d" % sPO)
        a("s_lshl_b32 s6, s3, 4")
        a("s_lshr_b32 s4, s%d, 2" % sw)
        a("s_lshl_b32 s4, s4, 3")
        a("s_add_u32 s6, s6, s4")
        a("s_add_u32 s6, s6, s%d" % sPO)
        a("s_add_u32 s6, s6, 0x%x" % ST)
        a("v_lshrrev_b32 v24, 2, v%d" % vN)
        a("v_lshlrev_b32 v24, 6, v24")
        a("v_lshl_add_u32 v24, v%d, 4, v24" % vG)
        a("s_lshl_b32 s3, s%d, 9" % sw)
        a("v_add_u32 v24, s3, v24")
        a("v_lshlrev_b32 v25, 3, v0")
        a("v_lshlrev_b32 v26, 2, v0")
        a("s_waitcnt lgkmcnt(0)")
        self.gather([(Dt + 8, 2, 23, 6, 0), (Dt, 4, 22, 5, 0), (Dt + 4, 4, 22, 5, 64)], 21)
        self.stamp(11)
        for kk in range(2):
            for t in range(2):
                acc = v(16, 4) if t == 0 else v(36, 4)
                a("v_mfma_f32_16x16x32_bf16 %s, %s, %s, %s" % (acc, v(W + (kk * 2 + t) * 4, 4), v(Dt + 4 * kk, 4), "0" if kk == 0 else acc))
        m, l = Dt + 8, Dt + 9
        self.dpp("v_max_f32", 28, m, m, "quad_perm:[1,0,3,2]")
        self.dpp("v_max_f32", 28, 28, 28, "quad_perm:[2,3,0,1]")
        a("v_sub_f32 v28, %s, v28" % v(m))
        a("v_exp_f32 v28, v28")
        a("v_mul_f32 v29, v28, %s" % v(l))
        self.dpp("v_add_f32", 29, 29, 29, "quad_perm:[1,0,3,2]")
        self.dpp("v_add_f32", 29, 29, 29, "quad_perm:[2,3,0,1]")
        a("v_rcp_f32 v29, v29")
        a("v_mul_f32 v28, v28, v29")
        accs = [16, 17, 18, 19, 36, 37, 38, 39]
        for r_ in accs:
            a("v_mul_f32 v%d, v28, v%d" % (r_, r_))
        for ctrl in ("quad_perm:[1,0,3,2]", "quad_perm:[2,3,0,1]"):
            for r_ in accs:
                self.dpp("v_add_f32", r_, r_, r_, ctrl)
        a("s_mov_b32 s8, 0x11111111")
        a("s_mov_b32 s9, 0x11111111")
        a("s_mov_b64 exec, s[8:9]")
        a("ds_write_b128 v24, v[16:19] offset:%d" % L_RED2)
        a("ds_write_b128 v24, v[36:39] offset:%d" % (L_RED2 + 256))
        a("s_mov_b64 exec, -1")
        a("s_lshr_b32 s3, s%d, 4" % sr)
        a("s_mul_i32 s5, s3, 28672")
        a("s_mul_i32 s3, s%d, 3584" % sx)
        a("s_add_u32 s5, s5, s3")
        a("s_lshl_b32 s3, s7, 8")
        a("s_add_u32 s5, s5, s3")
        a("s_add_u32 s5, s5, s%d" % sPO)
        a("s_add_u32 s5, s5, 0x%x" % XP)
        a("s_waitcnt lgkmcnt(0)")
        a("s_barrier")
        a("s_cmp_lg_u32 s%d, 7" % sw)
        a("s_cbranch_scc1 %s_e" % L)
        for w in range(8):
            a("ds_read_b64 %s, v25 offset:%d" % (v(VS + 2 * w, 2), L_RED2 + 512 * w))
        a("s_waitcnt lgkmcnt(4)")
        a("v_pk_add_f32 %s, %s, %s" % (v(VS, 2), v(VS, 2), v(VS + 2, 2)))
        a("v_pk_add_f32 %s, %s, %s" % (v(VS + 4, 2), v(VS + 4, 2), v(VS + 6, 2)))
        a("s_waitcnt lgkmcnt(0)")
        a("v_pk_add_f32 %s, %s, %s" % (v(VS + 8, 2), v(VS + 8, 2), v(VS + 10, 2)))
        a("v_pk_add_f32 %s, %s, %s" % (v(VS + 12, 2), v(VS + 12, 2), v(VS + 14, 2)))
        a("v_pk_add_f32 %s, %s, %s" % (v(VS, 2), v(VS, 2), v(VS + 4, 2)))
        a("v_pk_add_f32 %s, %s, %s" % (v(VS + 8, 2), v(VS + 8, 2), v(VS + 12, 2)))
        a("v_pk_add_f32 %s, %s, %s" % (v(VS, 2), v(VS, 2), v(VS + 8, 2)))
        a("v_cvt_pk_bf16_f32 v16, %s, %s" % (v(VS), v(VS + 1)))
        a("v_min_u32 v16, -2, v16")
        a("buffer_store_dword v16, v26, %s, s5 offen sc1" % s(sWS, 4))
        a("s_branch %s_e" % L)
        a.label(L + "_skip")
        a("s_waitcnt vmcnt(0)")
        a("s_barrier")
        a.label(L + "_e")
        self.stamp(12)

    def g_weights(self):
        a = self.a
        a("s_cmp_lt_u32 s%d, 4" % sw)
        a("s_cbranch_scc1 L_nogu")
        a("v_lshrrev_b32 v20, 2, v%d" % vN)
        a("v_lshl_add_u32 v20, v%d, 3, v20" % vG)
        a("v_lshlrev_b32 v20, 6, v20")
        a("v_and_b32 v21, 1, v%d" % vN)
        a("v_lshl_add_u32 v20, v21, 3, v20")
        a("v_bfe_u32 v21, v%d, 1, 1" % vN)
        a("v_mul_u32_u24 v21, %d, v21" % (448 * 64))
        a("v_add_u32 v20, v20, v21")
        a("s_and_b32 s3, s%d, 3" % sw)
        a("s_lshl_b32 s3, s3, 4")
        a("v_add_u32 v20, s3, v20")
        self.w_operands(20, L_WX, 64)
        a.label("L_nogu")

    def g_stage(self):
        a = self.a
        L = a.newlabel("Lgs")
        a("s_cmp_eq_u32 s%d, 7" % sw)
        a("s_cbranch_scc1 %s_b" % L)
        self.x_gather_reduce(XP, self.cfg["d_x"])
        self.stamp(13)
        self.x_publish(L_XL1, L_SL1)
        a.label(L + "_b")
        self.x_main_addr()
        a("v_and_b32 v22, 1, v%d" % vN)
        a("v_lshlrev_b32 v22, 9, v22")
        a("v_and_b32 v23, 1, v%d" % vG)
        a("v_lshl_add_u32 v22, v23, 3, v22")
        a("v_lshrrev_b32 v23, 1, v%d" % vG)
        a("v_lshl_add_u32 v22, v23, 2, v22")
        a("s_lshl_b32 s5, s%d, 12" % sx)
        a("s_lshr_b32 s3, s%d, 3" % sr)
        a("s_lshl_b32 s3, s3, 10")
        a("s_add_u32 s5, s5, s3")
        a("s_and_b32 s7, s%d, 7" % sr)
        a("s_lshl_b32 s3, s7, 6")
        a("s_add_u32 s5, s5, s3")
        a("s_and_b32 s3, s%d, 3" % sw)
        a("s_lshl_b32 s3, s3, 4")
        a("s_add_u32 s5, s5, s3")
        a("s_add_u32 s5, s5, s%d" % sPO)
        a("s_add_u32 s5, s5, 0x%x" % HB)
        a("s_waitcnt lgkmcnt(0)")
        a("s_barrier")
        self.stamp(14)
        a("s_cmp_lt_u32 s%d, 4" % sw)
        a("s_cbranch_scc1 %s_e" % L)
        a("s_cmp_eq_u32 s7, 7")
        a("s_cbranch_scc1 %s_e" % L)
        self.x_main(L_XL1, L_SL1)
        a("v_permlane32_swap_b32 v16, v18")
        a("v_permlane32_swap_b32 v17, v19")
        a("v_cvt_pk_bf16_f32 v20, v16, v17")
        a("v_cvt_pk_bf16_f32 v21, v18, v19")
        self.unpack(16, 20)
        self.unpack(18, 21)
        nl = "0x%08x" % f2u(-1.4426950408889634)
        a("v_mul_f32 v16, %s, v16" % nl)
        a("v_mul_f32 v17, %s, v17" % nl)
        a("v_exp_f32 v16, v16")
        a("v_exp_f32 v17, v17")
        a("v_add_f32 v16, 1.0, v16")
        a("v_add_f32 v17, 1.0, v17")
        a("v_rcp_f32 v16, v16")
        a("v_rcp_f32 v17, v17")
        a("v_cvt_pk_bf16_f32 v20, v16, v17")
        self.unpack(16, 20)
        a("v_mul_f32 v16, v16, v18")
        a("v_mul_f32 v17, v17, v19")
        a("v_cvt_pk_bf16_f32 v16, v16, v17")
        a("v_min_u32 v16, -2, v16")
        a("s_mov_b64 exec, %s" % s(sMask, 2))
        self.intra_store(lambda p: a("buffer_store_dword v16, v22, %s, s5 offen%s" % (s(sWS, 4), p)))
        a("s_mov_b64 exec, -1")
        a.label(L + "_e")
        self.stamp(15)

    def d_stage(self):
        a = self.a
        L = a.newlabel("Ld")
        a("s_cmp_lg_u32 s%d, 0" % sw)
        a("s_cbranch_scc1 %s_e" % L)
        a("s_cmp_ge_u32 s%d, 28" % sr)
        a("s_cbranch_scc1 %s_e" % L)
        W = VS
        a("v_lshrrev_b32 v16, 2, v%d" % vN)
        a("v_lshl_add_u32 v16, v%d, 3, v16" % vG)
        a("v_lshlrev_b32 v16, 5, v16")
        a("v_and_b32 v17, 3, v%d" % vN)
        a("v_lshl_add_u32 v16, v17, 3, v16")
        for ks in range(7):
            for hh in range(2):
                a("ds_read_b64_tr_b16 %s, v16 offset:%d" % (v(W + 4 * ks + 2 * hh, 2), L_WD + (32 * ks + 4 * hh) * 32))
        A0, A1, SA, T = VS + 28, VS + 29, VS + 30, VS + 31
        a("v_and_b32 %s, 7, v%d" % (v(A1), vN))
        a("v_lshlrev_b32 %s, 9, %s" % (v(A1), v(A1)))
        a("v_lshl_add_u32 %s, v%d, 4, %s" % (v(A1), vG, v(A1)))
        a("v_lshrrev_b32 %s, 3, v%d" % (v(A0), vN))
        a("v_lshl_add_u32 %s, %s, 6, %s" % (v(A0), v(A0), v(A1)))
        a("s_lshl_b32 s5, s%d, 12" % sx)
        a("s_add_u32 s5, s5, s%d" % sPO)
        a("s_add_u32 s5, s5, 0x%x" % HB)
        a("v_bfe_u32 %s, v%d, 2, 1" % (v(SA), vN))
        a("v_mul_u32_u24 %s, 28672, %s" % (v(SA), v(SA)))
        a("v_and_b32 %s, 3, v%d" % (v(T), vN))
        a("v_lshl_add_u32 %s, %s, 5, %s" % (v(SA), v(T), v(SA)))
        a("v_lshl_add_u32 %s, v%d, 3, %s" % (v(SA), vG, v(SA)))
        a("s_mul_i32 s6, s%d, 3584" % sx)
        a("s_lshl_b32 s3, s%d, 7" % sr)
        a("s_add_u32 s6, s6, s3")
        a("s_add_u32 s6, s6, s%d" % sPO)
        a("s_add_u32 s6, s6, 0x%x" % YP)
        a("s_waitcnt lgkmcnt(0)")
        self.gather([(20, 4, A0, 5, 0), (24, 4, A0, 5, 128), (28, 4, A0, 5, 256), (32, 4, A1, 5, 384)], T)
        self.stamp(16)
        for ks in range(7):
            acc = v(16, 4) if ks % 2 == 0 else v(36, 4)
            a("v_mfma_f32_16x16x32_bf16 %s, %s, %s, %s" % (acc, v(W + 4 * ks, 4), v(20 + 4 * (ks // 2), 4), "0" if ks < 2 else acc))
        for i in range(4):
            self.dpp("v_add_f32", 16 + i, 36 + i, 16 + i, "row_ror:8")
        a("v_cvt_pk_bf16_f32 v16, v16, v17")
        a("v_cvt_pk_bf16_f32 v17, v18, v19")
        a("v_min_u32 v16, -2, v16")
        a("v_min_u32 v17, -2, v17")
        a("s_mov_b32 s8, 0x00ff00ff")
        a("s_mov_b32 s9, 0x00ff00ff")
        a("s_mov_b64 exec, s[8:9]")
        a("buffer_store_dwordx2 v[16:17], %s, %s, s6 offen sc1" % (v(SA), s(sWS, 4)))
        a("s_mov_b64 exec, -1")
        a.label(L + "_e")
        self.stamp(17)

    def r_stage(self):
        a = self.a
        a("s_and_b32 s7, s%d, 7" % sr)
        a("s_cmp_lg_u32 s7, s%d" % sx)
        a("s_cbranch_scc1 L_fin")
        a("s_cmp_lg_u32 s7, s%d" % sw)
        a("s_cbranch_scc1 L_fin")
        a("s_cmp_eq_u32 s7, 7")
        a("s_cbranch_scc1 L_fin")
        self.x_gather_reduce(YP, self.cfg["d_r"])
        a("s_lshr_b32 s6, s%d, 3" % sr)
        a("s_mul_i32 s6, s6, 1792")
        a("s_mov_b32 exec_hi, 0")
        a("buffer_store_dwordx2 v[28:29], v24, %s, s6 offen" % s(sOut, 4))
        a("s_mov_b64 exec, -1")
        a("s_cmp_lg_u32 s2, 0")
        a("s_cbranch_scc1 L_fin")
        a("v_mov_b32 v16, s%d" % sTag)
        a("v_mov_b32 v17, 0x%x" % EPOCH)
        a("s_mov_b64 exec, 1")
        a("buffer_store_dword v16, v17, %s, 0 offen" % s(sWS, 4))
        a("s_mov_b64 exec, -1")
        a.label("L_fin")
        self.stamp(18)

    def build(self):
        a = self.a
        self.prologue()
        self.stamp(4)
        self.attn1()
        a.label("L_loop")
        self.attn_tail()
        self.o_stage()
        a("s_cmp_lg_u32 s%d, 0" % sPass)
        a("s_cbranch_scc1 L_nogu")
        self.g_weights()
        self.g_stage()
        self.d_stage()
        a("s_cmp_lg_u32 s%d, 0" % sPass)
        a("s_cbranch_scc1 L_last")
        a("s_mov_b32 s%d, 1" % sPass)
        a("s_mov_b32 s%d, 0x%x" % (sPO, PPITCH))
        self.q_stage()
        self.stamp(21)
        a("s_mov_b32 s%d, 24" % sStamp)
        self.attn2()
        a("s_branch L_loop")
        a.label("L_last")
        self.r_stage()
        if self.stamps:
            a("s_lshl_b32 s3, s2, 3")
            a("s_add_u32 s3, s3, s%d" % sw)
            a("s_lshl_b32 s3, s3, 8")
            a("s_add_u32 s3, s3, 0x%x" % STAMP_OFF)
            a("v_lshlrev_b32 v16, 2, v0")
            a("buffer_store_dword v%d, v16, %s, s3 offen" % (vSt, s(sWS, 4)))
        if self.cfg.get("dbgstamps"):
            a("s_cmp_lg_u32 s2, %d" % self.cfg.get("dbgwg", 0))
            a("s_cbranch_scc1 L_end")
            a("s_cmp_lg_u32 s%d, %d" % (sw, self.cfg.get("dbgwg", 0) & 7))
            a("s_cbranch_scc1 L_end")
            a("v_readlane_b32 s4, v%d, 0" % vSt)
            a("v_mov_b32 v17, 0")
            for i, idx in enumerate([2, 4, 6, 8, 9, 11, 13, 15, 17, 20, 30, 33, 35, 37, 41, 42]):
                a("v_readlane_b32 s3, v%d, %d" % (vSt, idx))
                a("s_sub_u32 s3, s3, s4")
                a("v_writelane_b32 v17, s3, %d" % i)
            a("v_lshlrev_b32 v16, 2, v0")
            a("buffer_store_dword v17, v16, %s, 0 offen" % s(sDbg, 4))
        a.label("L_end")
        lines = hazard.fix(a.lines, verbose=True)
        return wrap("\n".join(lines) + "\n", 256, 512, L_END, 256, 136)


if __name__ == "__main__":
    import argparse, json
    ap = argparse.ArgumentParser()
    ap.add_argument("out")
    ap.add_argument("--stamps", action="store_true")
    ap.add_argument("--cfg", default="{}")
    args = ap.parse_args()
    g = Gen(args.stamps, json.loads(args.cfg))
    open(args.out, "w").write(g.build())
    print("LDS", L_END)
    build(args.out)
```

```python
import sys, struct
from asmlib import *
import hazard

def f2u(x):
    return struct.unpack("<I", struct.pack("<f", x))[0]

PPITCH = 0x78000
OB, XP, YP, HB, ST = 0x0, 0x40000, 0x50000, 0x60000, 0x68000
QB1 = 0xF0000
QB0 = 0x100000
EPOCH = 0x120000
STAMP_OFF = 0x10000000
L_XL0 = 0
L_XL1 = L_XL0 + 1792
L_SL0 = L_XL1 + 1792
L_SL1 = L_SL0 + 256
L_WQ = 4096
L_KS = L_WQ + 57344
AREA = 8192
L_WO = L_KS + 8 * AREA
L_END = L_WO + 32768
sK, sV, sWS, sWq, sWo, sWg, sWu, sWd, sX, sOut, sDbg = 12, 16, 20, 24, 28, 32, 36, 40, 44, 48, 52
sKV0, sTag, sPass, sStamp, sKV1, sArea = 72, 73, 74, 75, 76, 77
sQg, sQl, sGg, sGl, sOg, sOl, sDg, sDl = 82, 83, 84, 85, 86, 87, 88, 89
sM2 = 80
sx, sr, sw, sPO, sFast, sBud = 96, 97, 98, 99, 100, 101
vL, vG, vN, vSt = 0, 1, 2, 3
vXres, vCs, vSel = 4, 8, 12
VF0, VF1, VS = 40, 72, 104
aK, aW = 0, 64
MF = "v_mfma_f32_16x16x32_bf16"

def rng(p, a, n):
    return "%s[%d:%d]" % (p, a, a + n - 1) if n > 1 else "%s%d" % (p, a)
def v(a, n=1): return rng("v", a, n)
def ac(a, n=1): return rng("a", a, n)
def s(a, n=1): return rng("s", a, n)


class Gen:
    def __init__(self, stamps=False, cfg=None):
        self.a = Asm()
        self.stamps = stamps
        self.cfg = dict(win=6, d_x=0, d_y=0, d_r=0, d_o=0, d_q=0, d_h=0, fast=True, rsleep=0, pretouch=True)
        if cfg: self.cfg.update(cfg)
        self.win = None
        self.nv = 0

    def vm(self, text):
        if self.win is not None:
            self.a("s_waitcnt vmcnt(%d)" % (self.win - 1))
        self.a(text)
        self.nv += 1
        return self.nv

    def wait_op(self, tag):
        self.a("s_waitcnt vmcnt(%d)" % (self.nv - tag))

    def stamp(self, i):
        if not self.stamps: return
        a = self.a
        a("s_memrealtime s[78:79]")
        a("s_add_u32 s3, s%d, %d" % (sStamp, i))
        a("s_waitcnt lgkmcnt(0)")
        a("s_mov_b32 m0, s3")
        a("s_nop 0")
        a("v_writelane_b32 v%d, s78, m0" % vSt)

    def unpack(self, d0, src):
        a = self.a
        a("v_lshlrev_b32 %s, 16, %s" % (v(d0), v(src)))
        a("v_and_b32 %s, 0xffff0000, %s" % (v(d0 + 1), v(src)))

    def rowred(self, op, r, t, steps=(16, 32)):
        a = self.a
        for st in steps:
            a("v_mov_b32 %s, %s" % (v(t), v(r)))
            a("v_permlane%d_swap_b32 %s, %s" % (st, v(r), v(t)))
            a("%s %s, %s, %s" % (op, v(r), v(r), v(t)))

    def dpp(self, op, d, s0, s1, ctrl):
        self.a("%s_dpp %s, %s, %s %s row_mask:0xf bank_mask:0xf" % (op, v(d), v(s0), v(s1), ctrl))

    def gather(self, loads, tmp, delay=0):
        a = self.a
        def ld():
            for dst, n, va, so, imm in loads:
                op = {1: "buffer_load_dword", 2: "buffer_load_dwordx2", 4: "buffer_load_dwordx4"}[n]
                a("%s %s, %s, %s, %s offen offset:%d sc1" % (op, v(dst, n), v(va), s(sWS, 4), s(so), imm))
        if delay:
            a("s_sleep %d" % delay)
        ld()
        L = a.newlabel("Lg")
        a.label(L)
        a("s_waitcnt vmcnt(0)")
        regs = [d + i for d, n, _, _, _ in loads for i in range(n)]
        a("v_max3_u32 %s, %s, %s, %s" % (v(tmp), v(regs[0]), v(regs[1]), v(regs[2]))); rest = regs[3:]
        while rest:
            if len(rest) >= 2:
                a("v_max3_u32 %s, %s, %s, %s" % (v(tmp), v(tmp), v(rest[0]), v(rest[1]))); rest = rest[2:]
            else:
                a("v_max_u32 %s, %s, %s" % (v(tmp), v(tmp), v(rest[0]))); rest = []
        a("v_cmp_eq_u32 vcc, -1, %s" % v(tmp))
        a("s_cbranch_vccz %s_ok" % L)
        a("s_sub_u32 s%d, s%d, 1" % (sBud, sBud))
        a("s_cbranch_scc1 %s_to" % L)
        if self.cfg["rsleep"]:
            a("s_sleep %d" % self.cfg["rsleep"])
        a("s_mov_b64 exec, vcc")
        ld()
        a("s_mov_b64 exec, -1")
        a("s_branch %s" % L)
        a.label(L + "_to")
        a("s_mov_b32 s%d, 0" % sBud)
        a.label(L + "_ok")

    def intra_store(self, fn):
        a = self.a
        if not self.cfg["fast"]:
            fn(" sc1"); return
        L = a.newlabel("Ls")
        a("s_cmp_eq_u32 s%d, 0" % sFast)
        a("s_cbranch_scc1 %s_slow" % L)
        fn("")
        a("s_branch %s_done" % L)
        a.label(L + "_slow")
        fn(" sc1")
        a.label(L + "_done")

    def dma_ops(self, srd, vaddr, sg, sl, gstep, n):
        ops = []
        for i in range(n):
            ops.append((["s_mov_b32 m0, s%d" % sl, "s_add_u32 s%d, s%d, 1024" % (sl, sl)],
                        "buffer_load_dwordx4 %s, %s, s%d offen nt lds" % (v(vaddr), s(srd, 4), sg),
                        ["s_add_u32 s%d, s%d, %d" % (sg, sg, gstep)]))
        return ops

    def k_ops(self, c):
        t, hf = c >> 1, c & 1
        return [(["s_add_u32 s4, s%d, %d" % (sArea, (c & 1) * 4096 + i * 1024), "s_mov_b32 m0, s4",
                  "s_add_u32 s3, s%d, %d" % (sKV0, (16 * t + 4 * i) * 512 + 256 * hf)],
                 "buffer_load_dwordx4 v%d, %s, s3 offen nt lds" % (40 + i, s(sK, 4)), []) for i in range(4)]

    def v_ops(self, hf, dst):
        return [([], "buffer_load_dwordx4 %s, v37, %s, s%d offen offset:%d nt" % (
            v(dst + 4 * j, 4), s(sV, 4), sKV0 if j < 4 else sKV1, (j & 3) * 512 + hf * 256), []) for j in range(8)]

    def run(self, seq):
        for name in seq.split():
            pre, op, post = self.st[name].pop(0)
            for x in pre: self.a(x)
            self.tags.setdefault(name, []).append(self.vm(op))
            for x in post: self.a(x)

    def prologue(self):
        a = self.a
        self.st = {"Q": self.dma_ops(sWq, 19, sQg, sQl, 65536, 7), "G": self.dma_ops(sWg, 48, sGg, sGl, 16 * 3584, 7),
                   "O": self.dma_ops(sWo, 49, sOg, sOl, 16 * 896, 4), "D": self.dma_ops(sWd, 50, sDg, sDl, 0, 1),
                   "V0": self.v_ops(0, VF1), "V1": self.v_ops(1, VS)}
        for c in range(4): self.st["K%d" % c] = self.k_ops(c)
        self.tags = {}
        a("s_cmp_ge_u32 s2, 256")
        a("s_cbranch_scc1 L_end")
        a("s_load_dwordx16 s[56:71], s[0:1], 0")
        a("s_load_dwordx8 s[72:79], s[0:1], 64")
        if self.stamps:
            a("s_memrealtime s[8:9]")
        a("v_lshrrev_b32 v1, 6, v0")
        a("v_and_b32 v0, 63, v0")
        a("v_readfirstlane_b32 s%d, v1" % sw)
        a("v_lshlrev_b32 v16, 4, v0")
        a("v_lshrrev_b32 v%d, 4, v0" % vG)
        a("v_and_b32 v%d, 15, v0" % vN)
        a("s_and_b32 s%d, s2, 7" % sx)
        a("s_lshr_b32 s%d, s2, 3" % sr)
        a("v_lshrrev_b32 v19, 3, v0")
        a("v_lshlrev_b32 v19, 13, v19")
        a("v_and_b32 v20, 7, v0")
        a("v_lshl_add_u32 v19, v20, 4, v19")
        a("s_and_b32 s6, s%d, 7" % sr)
        a("s_lshl_b32 s6, s6, 7")
        a("s_lshl_b32 s7, s%d, 10" % sx)
        a("s_add_u32 s6, s6, s7")
        a("s_mul_i32 s%d, s%d, %d" % (sQg, sw, 7 * 65536))
        a("s_add_u32 s%d, s%d, s6" % (sQg, sQg))
        a("s_mul_i32 s%d, s%d, %d" % (sQl, sw, 7 * 1024))
        a("s_add_u32 s%d, s%d, %d" % (sQl, sQl, L_WQ))
        a("s_mov_b32 s%d, s%d" % (sGl, sQl))
        a("s_lshr_b32 s3, s%d, 2" % sr)
        a("s_lshl_b32 s3, s3, 3")
        a("s_add_u32 s3, s3, s%d" % sx)
        a("s_lshl_b32 s3, s3, 21")
        a("s_and_b32 s4, s%d, 3" % sr)
        a("s_lshl_b32 s4, s4, 17")
        a("s_add_u32 s3, s3, s4")
        a("s_lshl_b32 s4, s%d, 14" % sw)
        a("s_add_u32 s3, s3, s4")
        a("s_add_u32 s6, s3, %d" % (3072 * 512))
        a("s_lshl_b32 s7, s%d, 13" % sw)
        a("s_add_u32 s7, s7, %d" % L_KS)
        a("v_xor_b32 v38, v%d, v%d" % (vN, vG))
        a("v_lshlrev_b32 v38, 4, v38")
        a("v_lshl_add_u32 v40, v%d, 9, v38" % vG)
        for i in range(1, 4):
            a("v_xor_b32 v%d, %d, v40" % (40 + i, 64 * i))
        self.x_col_addr(24, 25)
        for i in range(4):
            a("v_mov_b32 v%d, -1" % (32 + i))
        a("s_mov_b32 s10, 0x%x" % EPOCH)
        a("s_lshl_b32 s5, s2, 12")
        srds = [(sX, 56, 7168), (sK, 58, 1 << 27), (sV, 60, 1 << 27), (sWq, 62, 448 * 8192), (sWo, 64, 4096 * 896),
                (sWg, 68, 448 * 3584), (sWu, 70, 448 * 3584), (sWd, 72, 1792 * 896), (sOut, 74, 7168), (sDbg, 76, 256),
                (sWS, 78, 1 << 29)]
        for d, src, n in srds:
            if d == sWu: continue
            a("s_mov_b32 s%d, 0x%x" % (d + 2, n))
            a("s_mov_b32 s%d, 0x00020000" % (d + 3))
        def mk(i):
            d, src, n = srds[i]
            a("s_mov_b64 s[%d:%d], s[%d:%d]" % (d, d + 1, src, src + 1))
        a("s_lshr_b32 s3, s%d, 3" % sr)
        a("s_mul_i32 s3, s3, 1792")
        a("s_waitcnt lgkmcnt(0)")
        for i in (3, 10, 0, 1, 7, 8, 9): mk(i)
        a("s_load_dword s11, s[78:79], s10")
        a("s_mov_b32 s%d, s6" % sKV0)
        a("s_mov_b32 s%d, s7" % sArea)
        a("s_cmp_lg_u32 s%d, 7" % sw)
        a("s_cbranch_scc1 L_noclr")
        for i in range(4):
            a("buffer_store_dwordx4 v[32:35], v16, %s, s5 offen offset:%d sc1" % (s(sWS, 4), 1024 * i))
        a.label("L_noclr")
        a("buffer_load_dwordx2 v[28:29], v24, %s, s3 offen" % s(sX, 4))
        self.run("Q K0 Q K0 Q K0")
        self.win = self.cfg["win"]
        a("s_cmp_lg_u32 s%d, 7" % sw)
        a("s_cbranch_scc1 L_noarr")
        a("s_getreg_b32 s3, hwreg(HW_REG_XCC_ID, 0, 4)")
        a("s_and_b32 s3, s3, 7")
        a("s_or_b32 s3, s3, 0x80")
        a("v_mov_b32 v20, s3")
        a("s_lshl_b32 s4, s%d, 5" % sx)
        a("s_add_u32 s4, s4, s%d" % sr)
        a("v_mov_b32 v21, s4")
        a("s_waitcnt vmcnt(7)")
        a("s_mov_b64 exec, 1")
        a("buffer_store_byte v20, v21, %s, 0 offen sc1" % s(sDbg, 4))
        a("s_mov_b64 exec, -1")
        a("v_mov_b32 v20, 0")
        a("v_and_b32 v21, 7, v0")
        a("v_lshlrev_b32 v21, 2, v21")
        a("ds_write_b32 v21, v20 offset:%d" % (L_SL0 + 224))
        a("ds_write_b32 v21, v20 offset:%d" % (L_SL1 + 224))
        a.label("L_noarr")
        for i in (2, 4): mk(i)
        a("s_cmp_ge_u32 s%d, 4" % sw)
        a("s_cselect_b64 s[%d:%d], s[70:71], s[68:69]" % (sWg, sWg + 1))
        if self.stamps:
            a("v_mov_b32 v%d, 0" % vSt)
            a("v_writelane_b32 v%d, s8, 0" % vSt)
        a("v_lshl_add_u32 v44, v%d, 8, v38" % vN)
        a("v_add_u32 v44, s%d, v44" % sArea)
        for i in range(1, 4):
            a("v_xor_b32 v%d, %d, v44" % (44 + i, 64 * i))
        a("v_lshlrev_b32 v37, 4, v%d" % vN)
        a("v_lshl_add_u32 v37, v%d, 11, v37" % vG)
        a("s_add_u32 s%d, s%d, 8192" % (sKV1, sKV0))
        self.weight_addrs()
        a("s_waitcnt lgkmcnt(0)")
        a("s_add_u32 s%d, s11, 1" % sTag)
        a("s_mov_b32 s%d, 0" % sStamp)
        a("s_mov_b32 s%d, 0" % sPass)
        a("s_mov_b32 s%d, 0" % sPO)
        a("s_mov_b32 s%d, 0" % sFast)
        a("s_mov_b32 s%d, 30000" % sBud)
        a("s_mov_b32 s%d, 0x00030003" % sM2)
        a("s_mov_b32 s%d, 0x00030003" % (sM2 + 1))
        a("v_and_b32 v20, 1, v%d" % vN)
        a("v_lshlrev_b32 v20, 4, v20")
        a("v_mov_b32 v21, 0x3f80")
        a("v_lshlrev_b32 v21, v20, v21")
        a("v_bfe_u32 v20, v%d, 1, 2" % vN)
        for c in range(4):
            a("v_cmp_eq_u32 vcc, %d, v20" % c)
            a("v_cndmask_b32 v%d, 0, v21, vcc" % (vSel + c))
        self.x_pub_addr()
        self.run("Q K0 Q K1 Q K1 Q K1 K1 V0 V0")
        a("s_cmp_eq_u32 s%d, 7" % sw)
        a("s_cbranch_scc1 L_nopub")
        self.x_publish(L_XL0, L_SL0)
        a.label("L_nopub")
        self.x_unpack()
        self.stamp(1)
        self.wait_op(self.tags["Q"][6])
        a("s_waitcnt lgkmcnt(0)")
        a("s_barrier")
        self.stamp(2)
        self.run("V0 V0")
        a("s_cmp_ge_u32 s%d, 4" % sw)
        a("s_cbranch_scc1 L_nowq")
        a("v_lshrrev_b32 v20, 2, v%d" % vN)
        a("v_lshl_add_u32 v20, v%d, 3, v20" % vG)
        a("v_lshlrev_b32 v20, 7, v20")
        a("v_and_b32 v21, 3, v%d" % vN)
        a("v_lshl_add_u32 v20, v21, 3, v20")
        a("s_lshl_b32 s3, s%d, 5" % sw)
        a("v_add_u32 v20, s3, v20")
        self.w_operands(20, lambda ks, hh: L_WQ + (32 * ks + 4 * hh) * 128, "s_barrier")
        self.stamp(3)
        self.x_main_addr()
        self.q_store_addr(22, 5, True)
        self.q_main(True)
        a("s_branch L_wq_done")
        a.label("L_nowq")
        a("s_barrier")
        a.label("L_wq_done")

    def weight_addrs(self):
        a = self.a
        a("v_lshrrev_b32 v20, 2, v0")
        a("v_and_b32 v21, 3, v0")
        a("v_mul_u32_u24 v48, 3584, v20")
        a("v_lshl_add_u32 v48, v21, 4, v48")
        a("v_mul_u32_u24 v49, 896, v20")
        a("v_lshl_add_u32 v49, v21, 4, v49")
        a("v_lshrrev_b32 v20, 1, v0")
        a("v_and_b32 v21, 1, v0")
        a("v_mul_u32_u24 v50, 896, v20")
        a("v_lshl_add_u32 v50, v21, 4, v50")
        a("s_mul_i32 s%d, s%d, 448" % (sGg, sx))
        a("s_and_b32 s4, s%d, 7" % sr)
        a("s_min_u32 s4, s4, 6")
        a("s_lshl_b32 s4, s4, 6")
        a("s_add_u32 s%d, s%d, s4" % (sGg, sGg))
        a("s_and_b32 s4, s%d, 3" % sw)
        a("s_mul_i32 s4, s4, %d" % (112 * 3584))
        a("s_add_u32 s%d, s%d, s4" % (sGg, sGg))
        a("s_lshl_b32 s3, s%d, 3" % sx)
        a("s_add_u32 s3, s3, s%d" % sw)
        a("s_mul_i32 s%d, s3, %d" % (sOg, 64 * 896))
        a("s_and_b32 s4, s%d, 15" % sr)
        a("s_min_u32 s4, s4, 13")
        a("s_lshl_b32 s4, s4, 6")
        a("s_add_u32 s%d, s%d, s4" % (sOg, sOg))
        a("s_lshl_b32 s%d, s%d, 12" % (sOl, sw))
        a("s_add_u32 s%d, s%d, %d" % (sOl, sOl, L_WO))
        a("s_mul_i32 s%d, s%d, %d" % (sDg, sx, 224 * 896))
        a("s_min_u32 s4, s%d, 27" % sr)
        a("s_lshl_b32 s4, s4, 5")
        a("s_add_u32 s%d, s%d, s4" % (sDg, sDg))
        a("s_min_u32 s4, s%d, 6" % sw)
        a("s_mul_i32 s4, s4, %d" % (32 * 896))
        a("s_add_u32 s%d, s%d, s4" % (sDg, sDg))
        a("s_add_u32 s%d, s%d, 4096" % (sDl, sArea))

    def w_operands(self, va, off, mid=None):
        a = self.a
        for ks in range(14):
            for hh in range(2):
                a("ds_read_b64_tr_b16 %s, %s offset:%d" % (ac(aW + ks * 4 + hh * 2, 2), v(va), off(ks, hh)))
        for c in range(4):
            a("v_mov_b32 v%d, 0x3f803f80" % (32 + c))
        a("s_waitcnt lgkmcnt(0)")
        if mid: a(mid)
        for ks in range(14):
            a("%s %s, %s, v[32:35], %s" % (MF, v(vCs, 4), ac(aW + ks * 4, 4), "0" if ks == 0 else v(vCs, 4)))

    def k_read(self, c):
        a = self.a
        t, hf = c >> 1, c & 1
        self.wait_op(self.tags["K%d" % c][3])
        for k in range(4):
            a("ds_read_b128 %s, v%d offset:%d" % (ac(aK + (t * 8 + hf * 4 + k) * 4, 4), 44 + k, (c & 1) * 4096))
        a("s_waitcnt lgkmcnt(0)")

    def q_store_addr(self, vd, sd, first):
        a = self.a
        k = 1 if first else 0
        a("v_and_b32 %s, 1, v%d" % (v(vd), vN))
        a("v_lshlrev_b32 %s, %d, %s" % (v(vd), 10 + k, v(vd)))
        a("v_lshrrev_b32 %s, 1, v%d" % (v(vd + 1), vG))
        a("v_lshl_add_u32 %s, %s, %d, %s" % (v(vd), v(vd + 1), 8 + k, v(vd)))
        a("v_and_b32 %s, 1, v%d" % (v(vd + 1), vG))
        a("v_lshl_add_u32 %s, %s, %d, %s" % (v(vd), v(vd + 1), 3 + k, v(vd)))
        a("s_lshl_b32 s%d, s%d, %d" % (sd, sx, 13 + k))
        a("s_add_u32 s%d, s%d, 0x%x" % (sd, sd, QB0 if first else QB1))
        a("s_lshr_b32 s3, s%d, 3" % sr)
        a("s_lshl_b32 s3, s3, %d" % (11 + k))
        a("s_add_u32 s%d, s%d, s3" % (sd, sd))
        a("s_and_b32 s3, s%d, 3" % sr)
        a("s_lshl_b32 s3, s3, %d" % (6 + k))
        a("s_add_u32 s%d, s%d, s3" % (sd, sd))
        a("s_bfe_u32 s3, s%d, 0x10002" % sr)
        a("s_lshl_b32 s3, s3, %d" % (4 + k))
        a("s_add_u32 s%d, s%d, s3" % (sd, sd))
        a("s_bfe_u32 s3, s%d, 0x10001" % sw)
        a("s_lshl_b32 s3, s3, %d" % (5 + k))
        a("s_add_u32 s%d, s%d, s3" % (sd, sd))
        a("s_and_b32 s3, s%d, 1" % sw)
        a("s_lshl_b32 s3, s3, %d" % (9 + k))
        a("s_add_u32 s%d, s%d, s3" % (sd, sd))

    def x_col_addr(self, vd, vt):
        a = self.a
        a("v_lshrrev_b32 %s, 2, v%d" % (v(vd), vN))
        a("v_lshlrev_b32 %s, 5, %s" % (v(vd), v(vd)))
        a("v_and_b32 %s, 1, v%d" % (v(vt), vN))
        a("v_lshl_add_u32 %s, %s, 4, %s" % (v(vd), v(vt), v(vd)))
        a("v_and_b32 %s, 1, v%d" % (v(vt), vG))
        a("v_lshl_add_u32 %s, %s, 3, %s" % (v(vd), v(vt), v(vd)))
        a("v_bfe_u32 %s, v%d, 1, 1" % (v(vt), vN))
        a("v_mul_u32_u24 %s, 896, %s" % (v(vt), v(vt)))
        a("v_add_u32 %s, %s, %s" % (v(vd), v(vd), v(vt)))
        a("s_lshl_b32 s3, s%d, 7" % sw)
        a("v_add_u32 %s, s3, %s" % (v(vd), v(vd)))

    def x_pub_addr(self):
        a = self.a
        a("v_and_b32 v27, 2, v%d" % vN)
        a("v_and_b32 v26, 1, v%d" % vG)
        a("v_add_lshl_u32 v27, v27, v26, 3")
        a("s_lshl_b32 s3, s%d, 5" % sw)
        a("v_add_u32 v27, s3, v27")
        a("v_mov_b32 v26, 0x3f803f80")
        a("s_mov_b32 s8, 0x00050005")
        a("s_mov_b32 s9, 0")

    def x_gather_reduce(self, region, delay):
        a = self.a
        self.x_col_addr(24, 25)
        a("v_mul_u32_u24 v23, 3584, v%d" % vG)
        a("v_lshrrev_b32 v25, 2, v%d" % vN)
        a("v_lshl_add_u32 v23, v25, 7, v23")
        a("v_and_b32 v25, 3, v%d" % vN)
        a("v_lshl_add_u32 v23, v25, 4, v23")
        a("s_lshr_b32 s3, s%d, 4" % sr)
        a("s_mul_i32 s10, s3, 28672")
        a("s_add_u32 s10, s10, s%d" % sPO)
        a("s_bfe_u32 s3, s%d, 0x10003" % sr)
        a("s_lshl_b32 s3, s3, 6")
        a("s_add_u32 s10, s10, s3")
        a("s_lshl_b32 s3, s%d, 9" % sw)
        a("s_add_u32 s10, s10, s3")
        a("s_add_u32 s10, s10, 0x%x" % (region & 0xffffffff))
        a("s_add_u32 s11, s10, %d" % (4 * 3584))
        self.gather([(VS, 4, 23, 10, 0), (VS + 4, 4, 23, 11, 0)], 25, delay)
        a("%s v[16:19], %s, %s, %s" % (MF, v(vSel, 4), v(VS, 4), v(vXres, 4)))
        a("%s v[16:19], %s, %s, v[16:19]" % (MF, v(vSel, 4), v(VS + 4, 4)))
        a("v_cvt_pk_bf16_f32 v28, v16, v17")
        a("v_cvt_pk_bf16_f32 v29, v18, v19")

    def x_publish(self, XL, SL):
        a = self.a
        a("ds_write_b64 v24, v[28:29] offset:%d" % XL)
        a("v_dot2_f32_bf16 v16, v28, v26, 0")
        a("v_dot2_f32_bf16 v17, v28, v28, 0")
        a("v_dot2_f32_bf16 v16, v29, v26, v16")
        a("v_dot2_f32_bf16 v17, v29, v29, v17")
        a("s_nop 2")
        for ctrl in ("quad_perm:[1,0,3,2]", "row_ror:4", "row_ror:8"):
            self.dpp("v_add_f32", 16, 16, 16, ctrl)
            self.dpp("v_add_f32", 17, 17, 17, ctrl)
        a("s_mov_b64 exec, s[8:9]")
        a("ds_write_b64 v27, v[16:17] offset:%d" % SL)
        a("s_mov_b64 exec, -1")

    def x_unpack(self):
        self.unpack(vXres, 28)
        self.unpack(vXres + 2, 29)

    def x_main_addr(self):
        a = self.a
        a("v_and_b32 v30, 1, v%d" % vN)
        a("v_mul_u32_u24 v30, 896, v30")
        a("v_lshl_add_u32 v30, v%d, 4, v30" % vG)
        a("v_lshlrev_b32 v31, 4, v%d" % vN)

    def x_main(self, XL, SL):
        a = self.a
        for ks in range(2):
            a("ds_read_b128 %s, v30 offset:%d" % (v(VS + 4 * ks, 4), XL + ks * 64))
        a("ds_read_b128 v[32:35], v31 offset:%d" % SL)
        for ks in range(2, 8):
            a("ds_read_b128 %s, v30 offset:%d" % (v(VS + 4 * ks, 4), XL + ks * 64))
        stat = ["v_add_f32 v20, v32, v34", "v_add_f32 v21, v33, v35"]
        for ctrl in ("quad_perm:[2,3,0,1]", "row_ror:4", "row_ror:8"):
            stat.append("v_add_f32_dpp v20, v20, v20 %s row_mask:0xf bank_mask:0xf" % ctrl)
            stat.append("v_add_f32_dpp v21, v21, v21 %s row_mask:0xf bank_mask:0xf" % ctrl)
        inv = "0x%08x" % f2u(1.0 / 448.0)
        stat += ["v_mul_f32 v20, %s, v20" % inv,
                 "v_mul_f32 v21, %s, v21" % inv,
                 "v_fma_f32 v21, -v20, v20, v21",
                 "v_max_f32 v21, 0, v21",
                 "v_add_f32 v21, 0x%08x, v21" % f2u(1e-5),
                 "v_rsq_f32 v21, v21",
                 "v_mul_f32 v32, v20, v%d" % vCs,
                 "v_mul_f32 v33, v20, v%d" % (vCs + 1),
                 "v_mul_f32 v34, v20, v%d" % (vCs + 2),
                 "v_mul_f32 v35, v20, v%d" % (vCs + 3),
                 "v_mul_f32 v32, v21, v32",
                 "v_mul_f32 v33, v21, v33",
                 "v_mul_f32 v34, v21, v34",
                 "v_mul_f32 v35, v21, v35"]
        for ks in range(14):
            nxt = min(ks + 8, 14) - ks - 1 + (1 if ks < 2 else 0)
            a("s_waitcnt lgkmcnt(%d)" % nxt)
            a("%s v[16:19], %s, %s, %s" % (MF, ac(aW + 4 * ks, 4), v(VS + 4 * (ks % 8), 4), "0" if ks == 0 else "v[16:19]"))
            if ks + 8 < 14:
                a("ds_read_b128 %s, v30 offset:%d" % (v(VS + 4 * (ks % 8), 4), XL + (ks + 8) * 64))
            if ks >= 2:
                for _ in range(2):
                    if stat: a(stat.pop(0))
        assert not stat
        for i in range(4):
            a("v_fma_f32 v%d, v21, v%d, -v%d" % (16 + i, 16 + i, 32 + i))

    def q_main(self, first):
        a = self.a
        self.x_main(L_XL0, L_SL0)
        if first:
            a("v_cvt_pk_bf16_f32 v16, v16, v17")
            a("v_cvt_pk_bf16_f32 v18, v18, v19")
            a("v_mov_b32 v17, s%d" % sTag)
            a("v_mov_b32 v19, s%d" % sTag)
            a("s_mov_b64 exec, %s" % s(sM2, 2))
            a("buffer_store_dwordx4 v[16:19], v22, %s, s5 offen sc1" % s(sWS, 4))
            a("s_mov_b64 exec, -1")
            return
        a("v_cvt_pk_bf16_f32 v16, v16, v17")
        a("v_cvt_pk_bf16_f32 v17, v18, v19")
        a("v_min_u32 v16, -2, v16")
        a("v_min_u32 v17, -2, v17")
        a("s_mov_b64 exec, %s" % s(sM2, 2))
        self.intra_store(lambda p: a("buffer_store_dwordx2 v[16:17], v22, %s, s5 offen%s" % (s(sWS, 4), p)))
        a("s_mov_b64 exec, -1")

    def q_stage(self):
        a = self.a
        L = a.newlabel("Lq")
        self.x_main_addr()
        self.q_store_addr(22, 5, False)
        a("s_cmp_eq_u32 s%d, 7" % sw)
        a("s_cbranch_scc1 %s_b" % L)
        self.x_pub_addr()
        self.x_gather_reduce(YP - PPITCH, self.cfg["d_y"])
        self.stamp(20)
        self.x_publish(L_XL0, L_SL0)
        a.label(L + "_b")
        a("s_waitcnt lgkmcnt(0)")
        a("s_barrier")
        a("s_cmp_ge_u32 s%d, 4" % sw)
        a("s_cbranch_scc1 %s_e" % L)
        self.q_main(False)
        a.label(L + "_e")
        self.x_unpack()

    def chk_issue(self):
        self.a("buffer_load_dword v16, v17, %s, 0 offen sc1" % s(sDbg, 4))

    def chk_wait(self, after):
        a = self.a
        a("s_waitcnt vmcnt(%d)" % after)
        a.label("L_chk")
        a("s_mov_b32 s3, 0x80808080")
        a("v_and_b32 v20, s3, v16")
        a("v_cmp_ne_u32 vcc, s3, v20")
        a("s_cbranch_vccz L_chk_ok")
        a("s_sub_u32 s%d, s%d, 1" % (sBud, sBud))
        a("s_cbranch_scc1 L_chk_to")
        a("s_sleep 16")
        self.chk_issue()
        a("s_waitcnt vmcnt(0)")
        a("s_branch L_chk")
        a.label("L_chk_to")
        a("s_mov_b32 s%d, 0" % sBud)
        a.label("L_chk_ok")
        a("s_getreg_b32 s3, hwreg(HW_REG_XCC_ID, 0, 4)")
        a("s_and_b32 s3, s3, 7")
        a("s_or_b32 s3, s3, 0x80")
        a("s_mul_i32 s3, s3, 0x01010101")
        a("v_cmp_eq_u32 vcc, s3, v16")
        a("s_lshl_b32 s4, s%d, 3" % sx)
        a("s_lshr_b64 s[10:11], vcc, s4")
        a("s_and_b32 s3, s10, 0xff")
        a("s_cmp_eq_u32 s3, 0xff")
        a("s_cselect_b32 s%d, 1, 0" % sFast)

    def q_addr(self, first):
        a = self.a
        k = 1 if first else 0
        a("v_lshlrev_b32 v39, %d, v0" % (4 + k))
        a("s_lshl_b32 s5, s%d, %d" % (sx, 13 + k))
        a("s_add_u32 s5, s5, 0x%x" % (QB0 if first else QB1))
        a("s_lshr_b32 s3, s%d, 2" % sr)
        a("s_lshl_b32 s3, s3, %d" % (10 + k))
        a("s_add_u32 s5, s5, s3")
        a("s_mov_b32 s4, 0x%08x" % f2u(1.4426950408889634 / 16.0))

    def qk_softmax(self):
        a = self.a
        def mkb(ks):
            d = 28 + 4 * (ks & 1)
            return ["v_mov_b32_dpp v%d, v%d row_ror:%d row_mask:0xf bank_mask:0xf" % (d + c, 16 + c, 16 - 2 * ks) for c in range(4)]
        for ks in range(8):
            B = v(16, 4) if ks == 0 else v(28 + 4 * (ks & 1), 4)
            nx = mkb(ks + 1) if ks < 7 else []
            for t in range(2):
                a("%s %s, %s, %s, %s" % (MF, v(20 + 4 * t, 4), ac(aK + (t * 8 + ks) * 4, 4), B, "0" if ks == 0 else v(20 + 4 * t, 4)))
                if t == 0:
                    for x in nx: a(x)
        for c in range(4):
            a("v_mov_b32 v%d, 0" % (28 + c))
        a("v_max3_f32 v32, v20, v21, v22")
        a("v_max3_f32 v33, v24, v25, v26")
        a("v_max3_f32 v32, v32, v23, v27")
        a("v_max_f32 v32, v32, v33")
        self.rowred("v_max_f32", 32, 33)
        a("v_mul_f32 v32, s4, v32")
        for i in range(8):
            a("v_fma_f32 v%d, v%d, s4, -v32" % (20 + i, 20 + i))
        for i in range(8):
            a("v_exp_f32 v%d, v%d" % (20 + i, 20 + i))
        a("s_mov_b64 exec, %s" % s(sM2, 2))
        for i in range(4):
            a("v_cvt_pk_bf16_f32 v%d, v%d, v%d" % (28 + i, 20 + 2 * i, 21 + 2 * i))
        a("s_mov_b64 exec, -1")

    def l_sum(self):
        return ["v_add_f32 v33, v20, v21", "v_add_f32 v22, v22, v23", "v_add_f32 v24, v24, v25", "v_add_f32 v26, v26, v27",
                "v_add_f32 v33, v33, v22", "v_add_f32 v24, v24, v26", "v_add_f32 v33, v33, v24"]

    def transpose(self, src, dst, pairs=range(4)):
        a = self.a
        for c in pairs:
            for e in range(8):
                a("v_perm_b32 %s, %s, %s, s%d" % (v(dst + 4 * e + c), v(src + 4 * (2 * c + 1) + (e >> 1)), v(src + 4 * (2 * c) + (e >> 1)),
                                                 6 + (e & 1)))

    def pv(self, halves):
        a = self.a
        def mkp(u):
            d = 20 + 4 * (u & 1)
            return ["v_mov_b32_dpp v%d, v%d row_ror:%d row_mask:0xf bank_mask:0xf" % (d + c, 28 + c, 2 * u) for c in range(4)]
        for u in range(8):
            B = v(28, 4) if u == 0 else v(20 + 4 * (u & 1), 4)
            nx = mkp(u + 1) if u < 7 else []
            for i, hf in enumerate(halves):
                acc = v(16, 4) if hf == 0 else v(36, 4)
                F = VF0 if hf == 0 else VF1
                a("%s %s, %s, %s, %s" % (MF, acc, v(F + 4 * u, 4), B, "0" if u == 0 else acc))
                if i == 0:
                    for x in nx: a(x)

    def pretouch(self):
        a = self.a
        a("s_cmp_lg_u32 s%d, 7" % sw)
        a("s_cbranch_scc1 L_nopt")
        a("s_lshl_b32 s3, s%d, 5" % sx)
        a("s_add_u32 s3, s3, s%d" % sr)
        a("s_lshl_b32 s4, s3, 10")
        a("v_lshrrev_b32 v20, 1, v0")
        a("v_lshlrev_b32 v21, 7, v20")
        a("v_add_u32 v21, s4, v21")
        a("s_lshl_b32 s4, s3, 7")
        a("s_add_u32 s4, s4, 0x%x" % HB)
        a("v_mov_b32 v22, s4")
        a("v_cmp_eq_u32 vcc, 8, v20")
        a("v_cndmask_b32 v21, v21, v22, vcc")
        a("s_lshl_b32 s4, s3, 4")
        a("s_add_u32 s4, s4, 0x%x" % ST)
        a("v_mov_b32 v22, s4")
        a("v_cmp_eq_u32 vcc, 9, v20")
        a("v_cndmask_b32 v21, v21, v22, vcc")
        a("v_and_b32 v23, 1, v0")
        a("v_mul_u32_u24 v22, 0x%x, v23" % PPITCH)
        a("v_add_u32 v21, v21, v22")
        a("s_lshl_b32 s4, s3, 8")
        a("s_add_u32 s4, s4, 0x%x" % QB1)
        a("v_lshlrev_b32 v22, 7, v23")
        a("v_add_u32 v22, s4, v22")
        a("v_cmp_lt_u32 vcc, 9, v20")
        a("v_cndmask_b32 v21, v21, v22, vcc")
        a("s_mov_b32 exec_lo, 0x003fffff")
        a("s_mov_b32 exec_hi, 0")
        a("buffer_load_dword v38, v21, %s, 0 offen sc1" % s(sWS, 4))
        a("s_mov_b64 exec, 1")
        a("buffer_load_dword v39, v0, %s, 0 offen" % s(sOut, 4))
        a("s_mov_b64 exec, -1")
        a.label("L_nopt")

    def g_operands(self):
        a = self.a
        a("s_cmp_lt_u32 s%d, 4" % sw)
        a("s_cbranch_scc1 L_nogu")
        for i in range(2):
            a("v_mov_b32 v%d, v%d" % (22 + i, 32 + i))
        a("v_lshrrev_b32 v20, 2, v%d" % vN)
        a("v_lshl_add_u32 v20, v%d, 3, v20" % vG)
        a("v_lshlrev_b32 v20, 6, v20")
        a("v_and_b32 v21, 1, v%d" % vN)
        a("v_lshl_add_u32 v20, v21, 3, v20")
        a("v_bfe_u32 v21, v%d, 1, 1" % vN)
        a("v_mul_u32_u24 v21, %d, v21" % (448 * 64))
        a("v_add_u32 v20, v20, v21")
        a("s_and_b32 s3, s%d, 3" % sw)
        a("s_lshl_b32 s3, s3, 4")
        a("v_add_u32 v20, s3, v20")
        self.w_operands(20, lambda ks, hh: L_WQ + (32 * ks + 4 * hh) * 64)
        for i in range(2):
            a("v_mov_b32 v%d, v%d" % (32 + i, 22 + i))
        a.label("L_nogu")

    def attn1(self):
        a = self.a
        c = self.cfg
        self.k_read(0)
        self.run("K2 G K2 G K2 G K2 G")
        self.k_read(1)
        self.run("K3 G K3 G K3 G K3 O V0 O")
        self.q_addr(True)
        def qld():
            a("buffer_load_dwordx4 v[24:27], v39, %s, s5 offen sc1" % s(sWS, 4))
            a("buffer_load_dwordx4 v[28:31], v39, %s, s5 offen offset:16 sc1" % s(sWS, 4))
        qld()
        self.nv += 2
        tq = self.nv
        self.stamp(5)
        self.k_read(2)
        self.run("V0 O V0 O V0")
        self.k_read(3)
        self.run("D V1")
        self.wait_op(tq)
        a.label("L_q0")
        a("v_xor_b32 v16, s%d, v25" % sTag)
        a("v_xor_b32 v17, s%d, v27" % sTag)
        a("v_xor_b32 v18, s%d, v29" % sTag)
        a("v_xor_b32 v19, s%d, v31" % sTag)
        a("v_or3_b32 v16, v16, v17, v18")
        a("v_or_b32 v16, v16, v19")
        a("v_cmp_ne_u32 vcc, 0, v16")
        a("s_cbranch_vccz L_q0_ok")
        a("s_sub_u32 s%d, s%d, 1" % (sBud, sBud))
        a("s_cbranch_scc1 L_q0_to")
        a("s_mov_b64 exec, vcc")
        qld()
        a("s_mov_b64 exec, -1")
        a("s_waitcnt vmcnt(0)")
        a("s_branch L_q0")
        a.label("L_q0_to")
        a("s_mov_b32 s%d, 0" % sBud)
        a.label("L_q0_ok")
        for i in range(4):
            a("v_mov_b32 v%d, v%d" % (16 + i, 24 + 2 * i))
        self.stamp(6)
        self.qk_softmax()
        for x in self.l_sum(): a(x)
        self.rowred("v_add_f32", 33, 34)
        a("v_lshlrev_b32 v17, 2, v0")
        self.chk_issue(); self.nv += 1
        tchk = self.nv
        self.run("V1 V1 V1")
        a("s_barrier")
        self.g_operands()
        self.run("V1 V1")
        self.chk_wait(self.nv - tchk)
        if c["pretouch"]: self.pretouch()
        self.run("V1 V1")
        self.win = None
        self.wait_op(self.tags["V0"][7])
        a("s_mov_b32 s6, 0x05040100")
        a("s_mov_b32 s7, 0x07060302")
        self.transpose(VF1, VF0)
        self.pv([0])
        self.stamp(7)
        for p in range(4):
            self.wait_op(self.tags["V1"][2 * p + 1])
            self.transpose(VS, VF1, [p])
        self.stamp(8)
        self.pv([1])

    def attn2(self):
        a = self.a
        self.q_addr(False)
        self.gather([(16, 4, 39, 5, 0)], 20, self.cfg["d_q"])
        self.stamp(6)
        self.qk_softmax()
        for x in self.l_sum(): a(x)
        self.stamp(7)
        self.pv([0, 1])
        self.rowred("v_add_f32", 33, 34)

    def attn_tail(self):
        a = self.a
        L = a.newlabel("Lat")
        L_STA, L_RED = 3072, 0
        a("v_lshlrev_b32 v20, 4, v0")
        a("v_add_u32 v20, s%d, v20" % sArea)
        a("v_and_b32 v21, 1, v0")
        a("v_lshlrev_b32 v21, 6, v21")
        a("s_lshl_b32 s3, s%d, 2" % sw)
        a("s_add_u32 s3, s3, %d" % L_KS)
        a("v_add_u32 v21, s3, v21")
        a("s_mov_b64 exec, 3")
        a("ds_write_b32 v21, v32 offset:%d" % L_STA)
        a("ds_write_b32 v21, v33 offset:%d" % (L_STA + 32))
        a("s_mov_b64 exec, -1")
        a("ds_write_b128 v20, v[16:19] offset:%d" % L_RED)
        a("ds_write_b128 v20, v[36:39] offset:%d" % (L_RED + 1024))
        a("v_and_b32 v25, 0x39, v0")
        a("v_lshlrev_b32 v22, 3, v25")
        a("v_bfe_u32 v26, v0, 2, 1")
        a("v_lshl_add_u32 v22, v26, 4, v22")
        a("v_and_b32 v25, 2, v0")
        a("v_lshl_add_u32 v22, v25, 4, v22")
        a("s_lshl_b32 s3, s%d, 9" % sw)
        a("s_add_u32 s3, s3, %d" % L_KS)
        a("v_add_u32 v22, s3, v22")
        a("v_lshlrev_b32 v23, 6, v26")
        a("v_add_u32 v23, %d, v23" % L_KS)
        a("v_lshrrev_b32 v24, 3, v0")
        a("v_lshlrev_b32 v24, 8, v24")
        a("v_lshl_add_u32 v24, v26, 13, v24")
        a("v_and_b32 v25, 3, v0")
        a("v_lshl_add_u32 v24, v25, 2, v24")
        a("v_lshlrev_b32 v27, 7, v26")
        a("s_lshl_b32 s5, s%d, 1" % sx)
        a("s_lshr_b32 s3, s%d, 4" % sr)
        a("s_add_u32 s5, s5, s3")
        a("s_lshl_b32 s6, s5, 8")
        a("s_lshl_b32 s5, s5, 14")
        a("s_and_b32 s3, s%d, 15" % sr)
        a("s_lshl_b32 s4, s3, 3")
        a("s_add_u32 s6, s6, s4")
        a("s_lshl_b32 s4, s3, 4")
        a("s_add_u32 s5, s5, s4")
        a("s_lshl_b32 s4, s%d, 11" % sw)
        a("s_add_u32 s5, s5, s4")
        a("s_add_u32 s5, s5, s%d" % sPO)
        a("s_add_u32 s6, s6, s%d" % sPO)
        a("s_add_u32 s6, s6, 0x%x" % ST)
        a("s_waitcnt lgkmcnt(0)")
        a("s_barrier")
        self.stamp(9)
        a("s_cmp_ge_u32 s%d, 4" % sw)
        a("s_cbranch_scc1 %s_e" % L)
        M, Lr, D = VS, VS + 8, VS + 16
        a("ds_read_b128 %s, v23 offset:%d" % (v(M, 4), L_STA))
        a("ds_read_b128 %s, v23 offset:%d" % (v(M + 4, 4), L_STA + 16))
        for w in range(8):
            a("ds_read_b64 %s, v22 offset:%d" % (v(D + 2 * w, 2), L_RED + AREA * w))
        a("ds_read_b128 %s, v23 offset:%d" % (v(Lr, 4), L_STA + 32))
        a("ds_read_b128 %s, v23 offset:%d" % (v(Lr + 4, 4), L_STA + 48))
        a("s_waitcnt lgkmcnt(10)")
        a("v_max3_f32 v16, %s, %s, %s" % (v(M), v(M + 1), v(M + 2)))
        a("v_max3_f32 v17, %s, %s, %s" % (v(M + 3), v(M + 4), v(M + 5)))
        a("v_max3_f32 v16, v16, %s, %s" % (v(M + 6), v(M + 7)))
        a("v_max_f32 v16, v16, v17")
        for w in range(8):
            a("v_sub_f32 %s, %s, v16" % (v(M + w), v(M + w)))
        for w in range(8):
            a("v_exp_f32 %s, %s" % (v(M + w), v(M + w)))
        a("s_waitcnt lgkmcnt(2)")
        a("v_mul_f32 v18, %s, %s" % (v(M), v(D)))
        a("v_mul_f32 v19, %s, %s" % (v(M), v(D + 1)))
        for w in range(1, 8):
            a("v_fmac_f32 v18, %s, %s" % (v(M + w), v(D + 2 * w)))
            a("v_fmac_f32 v19, %s, %s" % (v(M + w), v(D + 2 * w + 1)))
        a("v_cvt_pk_bf16_f32 v18, v18, v19")
        a("v_min_u32 v18, -2, v18")
        self.intra_store(lambda p: a("buffer_store_dword v18, v24, %s, s5 offen%s" % (s(sWS, 4), p)))
        a("s_cmp_lg_u32 s%d, 0" % sw)
        a("s_cbranch_scc1 %s_e" % L)
        a("s_waitcnt lgkmcnt(0)")
        a("v_mul_f32 v17, %s, %s" % (v(M), v(Lr)))
        for w in range(1, 8):
            a("v_fmac_f32 v17, %s, %s" % (v(M + w), v(Lr + w)))
        a("v_min_u32 v16, -2, v16")
        a("v_min_u32 v17, -2, v17")
        a("s_mov_b64 exec, 0x11")
        self.intra_store(lambda p: a("buffer_store_dwordx2 v[16:17], v27, %s, s6 offen%s" % (s(sWS, 4), p)))
        a("s_mov_b64 exec, -1")
        a.label(L + "_e")
        a("s_waitcnt lgkmcnt(0)")
        self.stamp(10)

    def o_stage(self):
        a = self.a
        L = a.newlabel("Lo")
        a("s_and_b32 s7, s%d, 15" % sr)
        a("s_cmp_ge_u32 s7, 14")
        a("s_cbranch_scc1 %s_skip" % L)
        W, Dt = VS, VS + 16
        a("v_lshlrev_b32 v22, 4, v0")
        a("v_lshlrev_b32 v23, 3, v%d" % vN)
        a("s_lshl_b32 s3, s%d, 1" % sx)
        a("s_lshr_b32 s4, s%d, 4" % sr)
        a("s_add_u32 s3, s3, s4")
        a("s_lshl_b32 s5, s3, 14")
        a("s_lshl_b32 s4, s%d, 11" % sw)
        a("s_add_u32 s5, s5, s4")
        a("s_add_u32 s5, s5, s%d" % sPO)
        a("s_lshl_b32 s6, s3, 8")
        a("s_lshr_b32 s4, s%d, 2" % sw)
        a("s_lshl_b32 s4, s4, 7")
        a("s_add_u32 s6, s6, s4")
        a("s_add_u32 s6, s6, s%d" % sPO)
        a("s_add_u32 s6, s6, 0x%x" % ST)
        a("v_lshrrev_b32 v21, 2, v%d" % vN)
        a("v_lshlrev_b32 v20, 9, v21")
        a("v_lshl_add_u32 v20, v%d, 7, v20" % vG)
        a("v_and_b32 v25, 3, v%d" % vN)
        a("v_lshl_add_u32 v20, v25, 3, v20")
        a("s_lshl_b32 s3, s%d, 12" % sw)
        a("s_add_u32 s3, s3, %d" % L_WO)
        a("v_add_u32 v20, s3, v20")
        L_RED2 = 2048
        a("v_lshlrev_b32 v24, 6, v21")
        a("v_lshl_add_u32 v24, v%d, 4, v24" % vG)
        a("v_add_u32 v24, s%d, v24" % sArea)
        a("v_lshlrev_b32 v25, 3, v0")
        a("v_add_u32 v25, %d, v25" % L_KS)
        a("v_lshlrev_b32 v26, 2, v0")
        a("s_lshr_b32 s3, s%d, 4" % sr)
        a("s_mul_i32 s10, s3, 28672")
        a("s_mul_i32 s3, s%d, 3584" % sx)
        a("s_add_u32 s10, s10, s3")
        a("s_lshl_b32 s3, s7, 8")
        a("s_add_u32 s10, s10, s3")
        a("s_add_u32 s10, s10, s%d" % sPO)
        a("s_add_u32 s10, s10, 0x%x" % XP)
        a("s_mov_b32 s8, 0x11111111")
        a("s_mov_b32 s9, 0x11111111")
        for kk in range(2):
            for t in range(2):
                for hh in range(2):
                    a("ds_read_b64_tr_b16 %s, v20 offset:%d" % (v(W + (kk * 2 + t) * 4 + hh * 2, 2), (32 * kk + hh) * 64 + t * 32))
        self.gather([(Dt + 8, 2, 23, 6, 0), (Dt, 4, 22, 5, 0), (Dt + 4, 4, 22, 5, 1024)], 21, self.cfg["d_o"])
        a("s_waitcnt lgkmcnt(0)")
        self.stamp(11)
        m, l = Dt + 8, Dt + 9
        sc = ["v_max_f32_dpp v28, %s, %s quad_perm:[1,0,3,2] row_mask:0xf bank_mask:0xf" % (v(m), v(m)),
              "v_max_f32_dpp v28, v28, v28 quad_perm:[2,3,0,1] row_mask:0xf bank_mask:0xf",
              "v_sub_f32 v28, %s, v28" % v(m),
              "v_exp_f32 v28, v28"]
        for kk in range(2):
            for t in range(2):
                acc = v(16, 4) if t == 0 else v(36, 4)
                a("%s %s, %s, %s, %s" % (MF, acc, v(W + (kk * 2 + t) * 4, 4), v(Dt + 4 * kk, 4), "0" if kk == 0 else acc))
                a(sc.pop(0))
        a("v_mul_f32 v29, v28, %s" % v(l))
        self.dpp("v_add_f32", 29, 29, 29, "quad_perm:[1,0,3,2]")
        self.dpp("v_add_f32", 29, 29, 29, "quad_perm:[2,3,0,1]")
        a("v_rcp_f32 v29, v29")
        a("v_mul_f32 v28, v28, v29")
        accs = [16, 17, 18, 19, 36, 37, 38, 39]
        for r_ in accs:
            a("v_mul_f32 v%d, v28, v%d" % (r_, r_))
        for ctrl in ("quad_perm:[1,0,3,2]", "quad_perm:[2,3,0,1]"):
            for r_ in accs:
                self.dpp("v_add_f32", r_, r_, r_, ctrl)
        a("s_mov_b64 exec, s[8:9]")
        a("ds_write_b128 v24, v[16:19] offset:%d" % L_RED2)
        a("ds_write_b128 v24, v[36:39] offset:%d" % (L_RED2 + 256))
        a("s_mov_b64 exec, -1")
        a("s_waitcnt lgkmcnt(0)")
        a("s_barrier")
        a("s_cmp_lg_u32 s%d, 7" % sw)
        a("s_cbranch_scc1 %s_skip" % L)
        for w in range(8):
            a("ds_read_b64 %s, v25 offset:%d" % (v(VS + 2 * w, 2), L_RED2 + AREA * w))
        a("s_waitcnt lgkmcnt(4)")
        a("v_pk_add_f32 %s, %s, %s" % (v(VS, 2), v(VS, 2), v(VS + 2, 2)))
        a("v_pk_add_f32 %s, %s, %s" % (v(VS + 4, 2), v(VS + 4, 2), v(VS + 6, 2)))
        a("s_waitcnt lgkmcnt(0)")
        a("v_pk_add_f32 %s, %s, %s" % (v(VS + 8, 2), v(VS + 8, 2), v(VS + 10, 2)))
        a("v_pk_add_f32 %s, %s, %s" % (v(VS + 12, 2), v(VS + 12, 2), v(VS + 14, 2)))
        a("v_pk_add_f32 %s, %s, %s" % (v(VS, 2), v(VS, 2), v(VS + 4, 2)))
        a("v_pk_add_f32 %s, %s, %s" % (v(VS + 8, 2), v(VS + 8, 2), v(VS + 12, 2)))
        a("v_pk_add_f32 %s, %s, %s" % (v(VS, 2), v(VS, 2), v(VS + 8, 2)))
        a("v_cvt_pk_bf16_f32 v16, %s, %s" % (v(VS), v(VS + 1)))
        a("v_min_u32 v16, -2, v16")
        a("buffer_store_dword v16, v26, %s, s10 offen sc1" % s(sWS, 4))
        a.label(L + "_skip")
        self.stamp(12)

    def g_stage(self):
        a = self.a
        L = a.newlabel("Lgs")
        self.x_main_addr()
        a("v_and_b32 v22, 1, v%d" % vN)
        a("v_lshlrev_b32 v22, 4, v22")
        a("v_and_b32 v23, 1, v%d" % vG)
        a("v_lshl_add_u32 v22, v23, 3, v22")
        a("v_lshrrev_b32 v23, 1, v%d" % vG)
        a("v_lshl_add_u32 v22, v23, 2, v22")
        a("s_lshl_b32 s5, s%d, 12" % sx)
        a("s_lshr_b32 s3, s%d, 3" % sr)
        a("s_lshl_b32 s3, s3, 5")
        a("s_add_u32 s5, s5, s3")
        a("s_and_b32 s7, s%d, 7" % sr)
        a("s_lshr_b32 s3, s7, 1")
        a("s_lshl_b32 s3, s3, 10")
        a("s_add_u32 s5, s5, s3")
        a("s_and_b32 s3, s7, 1")
        a("s_lshl_b32 s3, s3, 7")
        a("s_add_u32 s5, s5, s3")
        a("s_and_b32 s3, s%d, 3" % sw)
        a("s_lshl_b32 s3, s3, 8")
        a("s_add_u32 s5, s5, s3")
        a("s_add_u32 s5, s5, s%d" % sPO)
        a("s_add_u32 s5, s5, 0x%x" % HB)
        a("s_cmp_eq_u32 s%d, 7" % sw)
        a("s_cbranch_scc1 %s_b" % L)
        self.x_pub_addr()
        self.x_gather_reduce(XP, self.cfg["d_x"])
        self.stamp(13)
        self.x_publish(L_XL1, L_SL1)
        a.label(L + "_b")
        a("s_waitcnt lgkmcnt(0)")
        a("s_barrier")
        self.stamp(14)
        a("s_cmp_lt_u32 s%d, 4" % sw)
        a("s_cbranch_scc1 %s_e" % L)
        a("s_cmp_eq_u32 s7, 7")
        a("s_cbranch_scc1 %s_e" % L)
        self.x_main(L_XL1, L_SL1)
        a("v_permlane32_swap_b32 v16, v18")
        a("v_permlane32_swap_b32 v17, v19")
        nl = "0x%08x" % f2u(-1.4426950408889634)
        a("v_mul_f32 v16, %s, v16" % nl)
        a("v_mul_f32 v17, %s, v17" % nl)
        a("v_exp_f32 v16, v16")
        a("v_exp_f32 v17, v17")
        a("v_add_f32 v16, 1.0, v16")
        a("v_add_f32 v17, 1.0, v17")
        a("v_rcp_f32 v16, v16")
        a("v_rcp_f32 v17, v17")
        a("v_mul_f32 v16, v16, v18")
        a("v_mul_f32 v17, v17, v19")
        a("v_cvt_pk_bf16_f32 v16, v16, v17")
        a("v_min_u32 v16, -2, v16")
        a("s_mov_b64 exec, %s" % s(sM2, 2))
        self.intra_store(lambda p: a("buffer_store_dword v16, v22, %s, s5 offen%s" % (s(sWS, 4), p)))
        a("s_mov_b64 exec, -1")
        a.label(L + "_e")
        self.x_unpack()
        self.stamp(15)

    def d_stage(self):
        a = self.a
        L = a.newlabel("Ld")
        a("s_cmp_lg_u32 s%d, 0" % sw)
        a("s_cbranch_scc1 %s_e" % L)
        a("s_cmp_ge_u32 s%d, 28" % sr)
        a("s_cbranch_scc1 %s_e" % L)
        W = VS
        a("v_lshrrev_b32 v16, 2, v%d" % vN)
        a("v_lshl_add_u32 v16, v%d, 3, v16" % vG)
        a("v_lshlrev_b32 v16, 5, v16")
        a("v_and_b32 v17, 3, v%d" % vN)
        a("v_lshl_add_u32 v16, v17, 3, v16")
        a("v_add_u32 v16, %d, v16" % (L_KS + 4096))
        for ks in range(7):
            for hh in range(2):
                a("ds_read_b64_tr_b16 %s, v%d offset:%d" % (v(W + 4 * ks + 2 * hh, 2), 16, ks * AREA + 4 * hh * 32))
        A0, A1, SA, T = VS + 28, VS + 29, VS + 30, VS + 31
        a("v_lshlrev_b32 %s, 4, v0" % v(A0))
        a("v_and_b32 %s, 0x37f, %s" % (v(A1), v(A0)))
        a("s_lshl_b32 s5, s%d, 12" % sx)
        a("s_add_u32 s5, s5, s%d" % sPO)
        a("s_add_u32 s5, s5, 0x%x" % HB)
        a("v_bfe_u32 %s, v%d, 2, 1" % (v(SA), vN))
        a("v_mul_u32_u24 %s, 28672, %s" % (v(SA), v(SA)))
        a("v_and_b32 %s, 3, v%d" % (v(T), vN))
        a("v_lshl_add_u32 %s, %s, 5, %s" % (v(SA), v(T), v(SA)))
        a("v_lshl_add_u32 %s, v%d, 3, %s" % (v(SA), vG, v(SA)))
        a("s_mul_i32 s6, s%d, 3584" % sx)
        a("s_lshl_b32 s3, s%d, 7" % sr)
        a("s_add_u32 s6, s6, s3")
        a("s_add_u32 s6, s6, s%d" % sPO)
        a("s_add_u32 s6, s6, 0x%x" % YP)
        a("s_mov_b32 s8, 0x00ff00ff")
        a("s_mov_b32 s9, 0x00ff00ff")
        self.gather([(20, 4, A0, 5, 0), (24, 4, A0, 5, 1024), (28, 4, A0, 5, 2048), (32, 4, A1, 5, 3072)], T, self.cfg["d_h"])
        a("s_waitcnt lgkmcnt(0)")
        self.stamp(16)
        for ks in range(7):
            acc = v(16, 4) if ks % 2 == 0 else v(36, 4)
            a("%s %s, %s, %s, %s" % (MF, acc, v(W + 4 * ks, 4), v(20 + 4 * (ks // 2), 4), "0" if ks < 2 else acc))
        for i in range(4):
            self.dpp("v_add_f32", 16 + i, 36 + i, 16 + i, "row_ror:8")
        a("v_cvt_pk_bf16_f32 v16, v16, v17")
        a("v_cvt_pk_bf16_f32 v17, v18, v19")
        a("v_min_u32 v16, -2, v16")
        a("v_min_u32 v17, -2, v17")
        a("s_mov_b64 exec, s[8:9]")
        a("buffer_store_dwordx2 v[16:17], %s, %s, s6 offen sc1" % (v(SA), s(sWS, 4)))
        a("s_mov_b64 exec, -1")
        a.label(L + "_e")
        self.stamp(17)

    def r_stage(self):
        a = self.a
        a("s_and_b32 s7, s%d, 7" % sr)
        a("s_cmp_lg_u32 s7, s%d" % sx)
        a("s_cbranch_scc1 L_fin")
        a("s_cmp_lg_u32 s7, s%d" % sw)
        a("s_cbranch_scc1 L_fin")
        a("s_cmp_eq_u32 s7, 7")
        a("s_cbranch_scc1 L_fin")
        a("s_lshr_b32 s6, s%d, 3" % sr)
        a("s_mul_i32 s6, s6, 1792")
        self.x_gather_reduce(YP, self.cfg["d_r"])
        a("s_mov_b32 exec_hi, 0")
        a("buffer_store_dwordx2 v[28:29], v24, %s, s6 offen" % s(sOut, 4))
        a("s_mov_b64 exec, -1")
        a("s_cmp_lg_u32 s2, 0")
        a("s_cbranch_scc1 L_fin")
        a("v_mov_b32 v16, s%d" % sTag)
        a("v_mov_b32 v17, 0x%x" % EPOCH)
        a("s_mov_b64 exec, 1")
        a("buffer_store_dword v16, v17, %s, 0 offen" % s(sWS, 4))
        a("s_mov_b64 exec, -1")
        a.label("L_fin")
        self.stamp(18)

    def build(self):
        a = self.a
        self.prologue()
        self.stamp(4)
        self.attn1()
        a.label("L_loop")
        self.attn_tail()
        self.o_stage()
        self.g_stage()
        self.d_stage()
        a("s_cmp_lg_u32 s%d, 0" % sPass)
        a("s_cbranch_scc1 L_last")
        a("s_mov_b32 s%d, 1" % sPass)
        a("s_mov_b32 s%d, 0x%x" % (sPO, PPITCH))
        self.q_stage()
        self.stamp(21)
        a("s_mov_b32 s%d, 24" % sStamp)
        self.attn2()
        a("s_branch L_loop")
        a.label("L_last")
        self.r_stage()
        if self.stamps:
            a("s_lshl_b32 s3, s2, 3")
            a("s_add_u32 s3, s3, s%d" % sw)
            a("s_lshl_b32 s3, s3, 8")
            a("s_add_u32 s3, s3, 0x%x" % STAMP_OFF)
            a("v_lshlrev_b32 v16, 2, v0")
            a("buffer_store_dword v%d, v16, %s, s3 offen" % (vSt, s(sWS, 4)))
        a.label("L_end")
        lines = hazard.fix(a.lines)
        return wrap("\n".join(lines) + "\n", 256, 512, L_END, 256, 136)


if __name__ == "__main__":
    import argparse, json
    ap = argparse.ArgumentParser()
    ap.add_argument("out")
    ap.add_argument("--stamps", action="store_true")
    ap.add_argument("--cfg", default="{}")
    args = ap.parse_args()
    g = Gen(args.stamps, json.loads(args.cfg))
    open(args.out, "w").write(g.build())
    build(args.out)
    print(args.out, "LDS", L_END)
```
